```python
import torch

def _softmax(x, axis=-1):
    return torch.softmax(x, dim=axis)
def _gelu(x):
    return torch.nn.functional.gelu(x, approximate="tanh")
def _silu(x):
    return torch.nn.functional.silu(x)
def _sigmoid(x):
    return torch.sigmoid(x)
def _layernorm(x, axis=-1, eps=1e-5):
    m = x.mean(dim=axis, keepdim=True)
    v = x.var(dim=axis, keepdim=True, unbiased=False)
    return (x - m) / torch.sqrt(v + eps)
def _scatter_add(tgt, idx, src, axis=0):
    return tgt.clone().index_add_(axis, idx, src)
def _segment_sum(src, seg, n):
    out = torch.zeros((n,) + src.shape[1:], dtype=src.dtype)
    return out.index_add_(0, seg, src)
def _pad(x, pw):
    flat = tuple(v for pair in reversed(pw) for v in pair)
    return torch.nn.functional.pad(x, flat)

kernel_name = 'concat_heads__mha_block_cached__mha_block_cached__near_ridge'

def setup_inputs():

    _w = (lambda a: (lambda t: t.to(torch.bfloat16) if t.is_floating_point() else t)(torch.as_tensor(a)))
    def _A_setup():
        B, Sq, D = 8, 144, 640
        H, Sk, Dh = 32, 512, 192
        return {
            "x": _w((lambda *s: torch.randn(*s, dtype=torch.bfloat16) * 0.8)(B, Sq, D)),
            "k_cache": _w((lambda *s: torch.randn(*s, dtype=torch.bfloat16) * 0.8)(B, H, Sk, Dh)),
            "v_cache": _w((lambda *s: torch.randn(*s, dtype=torch.bfloat16) * 0.05)(B, H, Sk, Dh)),
            "wq": _w((lambda *s: torch.randn(*s, dtype=torch.bfloat16) * 0.8)(D, H * Dh) * (D ** -0.5)),
            "wo": _w((lambda *s: torch.randn(*s, dtype=torch.bfloat16) * 0.05)(H * Dh, D) * ((H * Dh) ** -0.5)),
        }
    _A_in = _A_setup()

    def _B_setup():
        B, Sq, D = 8, 144, 640
        H, Sk, Dh = 32, 512, 192
        return {
            "x": _w((lambda *s: torch.randn(*s, dtype=torch.bfloat16) * 0.8)(B, Sq, D)),
            "k_cache": _w((lambda *s: torch.randn(*s, dtype=torch.bfloat16) * 0.8)(B, H, Sk, Dh)),
            "v_cache": _w((lambda *s: torch.randn(*s, dtype=torch.bfloat16) * 0.05)(B, H, Sk, Dh)),
            "wq": _w((lambda *s: torch.randn(*s, dtype=torch.bfloat16) * 0.8)(D, H * Dh) * (D ** -0.5)),
            "wo": _w((lambda *s: torch.randn(*s, dtype=torch.bfloat16) * 0.05)(H * Dh, D) * ((H * Dh) ** -0.5)),
        }
    _B_in = _B_setup()

    return {
        "A_x": _A_in["x"],
        "A_k_cache": _A_in["k_cache"],
        "A_v_cache": _A_in["v_cache"],
        "A_wq": _A_in["wq"],
        "A_wo": _A_in["wo"],
        "B_x": _B_in["x"],
        "B_k_cache": _B_in["k_cache"],
        "B_v_cache": _B_in["v_cache"],
        "B_wq": _B_in["wq"],
        "B_wo": _B_in["wo"],
    }

def reference(A_x, A_k_cache, A_v_cache, A_wq, A_wo, B_x, B_k_cache, B_v_cache, B_wq, B_wo):
    def _A_ref(x, k_cache, v_cache, wq, wo):
        B, Sq, D = x.shape
        H, Dh = 32, 192
        q = (lambda x, *d: x.permute(*d))((x @ wq).reshape(B, Sq, H, Dh), 0, 2, 1, 3)
        scores = torch.einsum("bhqd,bhkd->bhqk", q, k_cache) * (Dh ** -0.5)
        p = _softmax(scores, axis=-1)
        o = torch.einsum("bhqk,bhkd->bhqd", p, v_cache)
        return (lambda x, *d: x.permute(*d))(o, 0, 2, 1, 3).reshape(B, Sq, H * Dh) @ wo

    def _B_ref(x, k_cache, v_cache, wq, wo):
        B, Sq, D = x.shape
        H, Dh = 32, 192
        q = (lambda x, *d: x.permute(*d))((x @ wq).reshape(B, Sq, H, Dh), 0, 2, 1, 3)
        scores = torch.einsum("bhqd,bhkd->bhqk", q, k_cache) * (Dh ** -0.5)
        p = _softmax(scores, axis=-1)
        o = torch.einsum("bhqk,bhkd->bhqd", p, v_cache)
        return (lambda x, *d: x.permute(*d))(o, 0, 2, 1, 3).reshape(B, Sq, H * Dh) @ wo

    a = _A_ref(A_x, A_k_cache, A_v_cache, A_wq, A_wo)
    b = _B_ref(B_x, B_k_cache, B_v_cache, B_wq, B_wo)
    return torch.concatenate([a, b], axis=-1)
```

```python
from gen import Asm, vr, interleave, O_TASK

CHB = 38912
OOFF, WOFFB = 0, 18432
NCHB = 3
LDS_B = NCHB * CHB
PART = 0x2000000

S_O, S_W, S_PT = 4, 8, 12
S_WAVE, S_WS, S_GRP = 24, 25, 26
S_T0, S_T1, S_T2, S_T3 = 27, 28, 29, 30
S_KO, S_KW = 31, 32
S_M0O, S_M0W = 33, 34
S_CNT = 35
S_P, S_KS, S_B, S_NB = 36, 37, 38, 39
S_PTR = 40
S_WSP = 42
S_CH = 44
S_NT0 = 45
S_DBG = 60
S_TM = 64

V_L16, V_TMP = 1, 3
V_X1, V_X2, V_X3, V_X4 = 4, 5, 6, 7
V_VW = 8
V_VO = 13
V_AD = 16
V_ACC, V_A, V_B = 28, 88, 112
NVGPR_B = 152


def stampb(a, idx, dbg):
    if not dbg:
        return
    a.e("s_memtime s[%d:%d]" % (S_TM, S_TM + 1))
    a.e("s_waitcnt lgkmcnt(0)")
    a.e("v_mov_b32 v%d, s%d" % (V_TMP, S_TM))
    a.lines.append("    buffer_store_dword v%d, off, s[%d:%d], 0 offset:%d" % (V_TMP, S_DBG, S_DBG + 3, idx * 4))


def gen_oproj(a, opt):
    dbg = opt.get("dbgb", False)
    kn = "oproj_kernel"
    a.lines.append(".globl %s\n.p2align 8\n.type %s,@function" % (kn, kn))
    a.label(kn)
    a.e("s_cmp_ge_u32 s2, 256")
    a.e("s_cbranch_scc1 LB_end")
    a.e("s_and_b32 s%d, s2, 7" % S_T0)
    a.e("s_lshr_b32 s%d, s2, 3" % S_T1)
    a.e("s_lshr_b32 s%d, s%d, 2" % (S_P, S_T0))
    a.e("s_and_b32 s%d, s%d, 3" % (S_KS, S_T0))
    a.e("s_and_b32 s%d, s%d, 3" % (S_NB, S_T1))
    a.e("s_lshr_b32 s%d, s%d, 2" % (S_B, S_T1))
    a.e("s_lshl_b32 s%d, s%d, 1" % (S_CH, S_NB))
    a.e("s_add_u32 s%d, s%d, s%d" % (S_CH, S_CH, S_B))
    a.e("s_and_b32 s%d, s%d, 7" % (S_CH, S_CH))
    a.e("s_mul_i32 s%d, s%d, 3" % (S_CH, S_CH))
    if opt.get("norotb"):
        a.e("s_mov_b32 s%d, 0" % S_CH)
    a.e("s_mul_i32 s%d, s%d, 40" % (S_T2, S_P))
    a.e("s_add_u32 s%d, s0, s%d" % (S_T0 + 1, S_T2))
    a.e("s_addc_u32 s%d, s1, 0" % (S_T0 + 2))
    a.e("s_load_dwordx2 s[%d:%d], s[%d:%d], 32" % (S_PTR, S_PTR + 1, S_T0 + 1, S_T0 + 2))
    a.e("s_load_dwordx2 s[%d:%d], s[0:1], 96" % (S_WSP, S_WSP + 1))
    a.e("v_lshrrev_b32 v%d, 6, v0" % V_TMP)
    a.e("v_and_b32 v0, 63, v0")
    a.e("v_readfirstlane_b32 s%d, v%d" % (S_WAVE, V_TMP))
    a.e("v_lshlrev_b32 v%d, 4, v0" % V_L16)
    a.e("v_lshrrev_b32 v%d, 4, v0" % V_X1)
    a.e("v_and_b32 v%d, 15, v0" % V_X2)
    a.e("s_and_b32 s%d, s%d, 3" % (S_WS, S_WAVE))
    a.e("s_lshr_b32 s%d, s%d, 2" % (S_GRP, S_WAVE))
    a.e("s_mov_b32 s%d, 0x74208630" % S_T3)
    a.e("s_lshl_b32 s%d, s%d, 2" % (S_T0, S_WAVE))
    a.e("s_lshr_b32 s%d, s%d, s%d" % (S_NT0, S_T3, S_T0))
    a.e("s_and_b32 s%d, s%d, 15" % (S_NT0, S_NT0))
    tr0, tr1, bb = V_AD, V_AD + 1, V_AD + 2
    a.e("v_mul_u32_u24 v%d, 0xa00, v%d" % (tr0, V_X1))
    a.e("v_and_b32 v%d, 1, v%d" % (V_X4, V_X1))
    a.e("v_lshl_add_u32 v%d, v%d, 7, v%d" % (tr0, V_X4, tr0))
    a.e("v_lshl_add_u32 v%d, v%d, 3, v%d" % (tr0, V_X2, tr0))
    a.e("s_lshl_b32 s%d, s%d, 8" % (S_T3, S_NT0))
    a.e("s_add_u32 s%d, s%d, 0x%x" % (S_T3, S_T3, WOFFB))
    a.e("v_add_u32 v%d, s%d, v%d" % (tr0, S_T3, tr0))
    a.e("v_xor_b32 v%d, 0x80, v%d" % (tr1, tr0))
    a.e("v_mov_b32 v%d, v%d" % (bb, V_L16))
    for sl in (1, 2):
        for k in range(3):
            a.e("v_add_u32 v%d, 0x%x, v%d" % (V_AD + 4 * sl + k, sl * CHB, V_AD + k))
    for k in range(5):
        a.e("s_mul_i32 s%d, s%d, 20" % (S_T3, S_WS))
        a.e("s_add_u32 s%d, s%d, %d" % (S_T3, S_T3, 4 * k))
        a.e("v_add_u32 v%d, s%d, v%d" % (V_X2, S_T3, V_X1))
        a.e("v_mul_u32_u24 v%d, 0x67, v%d" % (V_X3, V_X2))
        a.e("v_lshrrev_b32 v%d, 10, v%d" % (V_X3, V_X3))
        a.e("v_mul_u32_u24 v%d, 10, v%d" % (V_X4, V_X3))
        a.e("v_sub_u32 v%d, v%d, v%d" % (V_X2, V_X2, V_X4))
        a.e("v_lshrrev_b32 v%d, 3, v0" % V_X4)
        a.e("v_xor_b32 v%d, v%d, v%d" % (V_X4, V_X4, V_X3))
        a.e("v_and_b32 v%d, 1, v%d" % (V_X4, V_X4))
        a.e("v_lshl_add_u32 v%d, v%d, 1, v%d" % (V_X3, V_X3, V_X4))
        a.e("v_bfe_u32 v%d, v0, 1, 2" % V_X4)
        a.e("v_lshl_add_u32 v%d, v%d, 2, v%d" % (V_X3, V_X3, V_X4))
        a.e("v_mul_u32_u24 v%d, 0x500, v%d" % (V_VW + k, V_X3))
        a.e("v_lshl_add_u32 v%d, v%d, 5, v%d" % (V_VW + k, V_X2, V_VW + k))
        a.e("v_and_b32 v%d, 1, v0" % V_X4)
        a.e("v_lshl_add_u32 v%d, v%d, 4, v%d" % (V_VW + k, V_X4, V_VW + k))
    a.e("s_mul_i32 s%d, s%d, 5120" % (S_M0W, S_WS))
    a.e("s_mul_i32 s%d, s%d, 4608" % (S_M0O, S_WS))
    a.e("v_add_u32 v%d, s%d, v%d" % (V_VO, S_M0O, V_L16))
    for i in range(60):
        a.e("v_mov_b32 v%d, 0" % (V_ACC + i))
    a.e("s_waitcnt lgkmcnt(0)")
    a.e("s_lshl_b32 s%d, s%d, 3" % (S_T3, S_P))
    a.e("s_add_u32 s%d, s%d, s%d" % (S_T3, S_T3, S_B))
    a.e("s_lshl_b32 s%d, s%d, 2" % (S_T0, S_T3))
    a.e("s_add_u32 s%d, s%d, s%d" % (S_T1, S_T0, S_KS))
    a.e("s_mul_i32 s%d, s%d, %d" % (S_T1, S_T1, 8 * O_TASK))
    a.e("s_add_u32 s%d, s%d, s%d" % (S_O, S_WSP, S_T1))
    a.e("s_addc_u32 s%d, s%d, 0" % (S_O + 1, S_WSP + 1))
    a.e("s_mov_b32 s%d, %d" % (S_O + 2, 8 * O_TASK))
    a.e("s_mov_b32 s%d, 0x20000" % (S_O + 3))
    a.e("s_add_u32 s%d, s%d, s%d" % (S_T0, S_T0, S_NB))
    a.e("s_lshl_b32 s%d, s%d, 2" % (S_T0, S_T0))
    a.e("s_add_u32 s%d, s%d, s%d" % (S_T0, S_T0, S_KS))
    a.e("s_mul_i32 s%d, s%d, 92160" % (S_T0, S_T0))
    a.e("s_add_u32 s%d, s%d, 0x%x" % (S_T0, S_T0, PART))
    a.e("s_add_u32 s%d, s%d, s%d" % (S_PT, S_WSP, S_T0))
    a.e("s_addc_u32 s%d, s%d, 0" % (S_PT + 1, S_WSP + 1))
    a.e("s_mov_b32 s%d, 92160" % (S_PT + 2))
    a.e("s_mov_b32 s%d, 0x20000" % (S_PT + 3))
    a.e("s_mul_i32 s%d, s%d, 1966080" % (S_T0, S_KS))
    a.e("s_mul_i32 s%d, s%d, 320" % (S_T1, S_NB))
    a.e("s_add_u32 s%d, s%d, s%d" % (S_T0, S_T0, S_T1))
    a.e("s_add_u32 s%d, s%d, s%d" % (S_W, S_PTR, S_T0))
    a.e("s_addc_u32 s%d, s%d, 0" % (S_W + 1, S_PTR + 1))
    a.e("s_sub_u32 s%d, 1966080, s%d" % (S_W + 2, S_T1))
    a.e("s_mov_b32 s%d, 0x20000" % (S_W + 3))
    a.e("s_mul_i32 s%d, s%d, 18432" % (S_KO, S_CH))
    a.e("s_mul_i32 s%d, s%d, 81920" % (S_KW, S_CH))
    if dbg:
        a.e("s_lshl_b32 s%d, s2, 3" % S_T3)
        a.e("s_add_u32 s%d, s%d, s%d" % (S_T3, S_T3, S_WAVE))
        a.e("s_lshl_b32 s%d, s%d, 7" % (S_T3, S_T3))
        a.e("s_add_u32 s%d, s%d, 0x4800000" % (S_T3, S_T3))
        a.e("s_add_u32 s%d, s%d, s%d" % (S_DBG, S_WSP, S_T3))
        a.e("s_addc_u32 s%d, s%d, 0" % (S_DBG + 1, S_WSP + 1))
        a.e("s_mov_b32 s%d, 128" % (S_DBG + 2))
        a.e("s_mov_b32 s%d, 0x20000" % (S_DBG + 3))
        a.e("s_memrealtime s[%d:%d]" % (S_TM, S_TM + 1))
        a.e("s_waitcnt lgkmcnt(0)")
        a.e("v_mov_b32 v%d, s%d" % (V_TMP, S_TM))
        a.lines.append("    buffer_store_dword v%d, off, s[%d:%d], 0 offset:52" % (V_TMP, S_DBG, S_DBG + 3))
    stampb(a, 0, dbg)
    WNT = " nt" if opt.get("wont") else ""

    def dma_chunk(grp, slot, tag):
        L = []
        base = slot * CHB
        if grp == 1:
            for n in range(5):
                g = ["s_add_u32 m0, s%d, 0x%x" % (S_M0O, base + OOFF + 1024 * n),
                     "s_add_u32 s%d, s%d, 0x%x" % (S_T3, S_KO, n * 1024)]
                if n == 4:
                    g.append("s_mov_b32 exec_hi, 0")
                g.append(("buffer_load_dwordx4 v%d, s[%d:%d], s%d offen lds" % (V_VO, S_O, S_O + 3, S_T3), tag))
                if n == 4:
                    g.append("s_mov_b32 exec_hi, -1")
                L.append(g)
            L.append(["s_add_u32 s%d, s%d, 18432" % (S_KO, S_KO),
                      "s_cmp_ge_u32 s%d, %d" % (S_KO, 8 * O_TASK),
                      "s_cselect_b32 s%d, 0, s%d" % (S_KO, S_KO)])
        else:
            for k in range(5):
                L.append(["s_add_u32 m0, s%d, 0x%x" % (S_M0W, base + WOFFB + 1024 * k), "s_nop 0",
                          ("buffer_load_dwordx4 v%d, s[%d:%d], s%d offen%s lds" % (V_VW + k, S_W, S_W + 3, S_KW, WNT), tag)])
            L.append(["s_add_u32 s%d, s%d, 81920" % (S_KW, S_KW),
                      "s_cmp_ge_u32 s%d, 1966080" % S_KW,
                      "s_cselect_b32 s%d, 0, s%d" % (S_KW, S_KW)])
        return L

    def reads(tiles, nn, slot, kh):
        fset = kh
        ad = V_AD + 4 * slot
        L = []
        for tau in range(nn):
            d = V_A + fset * 12 + tau * 4
            L.append(["ds_read_b64_tr_b16 %s, v%d offset:%d" % (vr(d, 2), ad, kh * 10240 + tau * 256)])
            L.append(["ds_read_b64_tr_b16 %s, v%d offset:%d" % (vr(d + 2, 2), ad + 1, kh * 10240 + tau * 256)])
        for j, t in enumerate(tiles):
            d = V_B + fset * 20 + j * 4
            L.append(["ds_read_b128 %s, v%d offset:%d" % (vr(d, 4), ad + 2, OOFF + kh * 9216 + t * 1024)])
        return L

    def mfmas(tiles, nn, fset):
        M = []
        for j, t in enumerate(tiles):
            for tau in range(nn):
                acc = V_ACC + (j * 3 + tau) * 4
                M.append("v_mfma_f32_16x16x32_bf16 %s, %s, %s, %s" % (
                    vr(acc, 4), vr(V_A + fset * 12 + tau * 4, 4), vr(V_B + fset * 20 + j * 4, 4), vr(acc, 4)))
        return M

    a.e("s_lshr_b32 s%d, s%d, 1" % (S_T3, S_WAVE))
    for v in range(1, 4):
        a.e("s_cmp_eq_u32 s%d, %d" % (S_T3, v))
        a.e("s_cbranch_scc1 LB_v%d" % v)
    for v in range(4):
        grp = v >> 1
        nn = (3, 2, 2, 3)[v]
        tiles = [0, 1, 2, 3, 4] if grp == 0 else [5, 6, 7, 8]
        if v:
            a.label("LB_v%d" % v)
        a.grp(dma_chunk(grp, 0, 0))
        a.grp(dma_chunk(grp, 1, 1))
        a.e("s_waitcnt vmcnt(5)")
        a.e("s_barrier")
        a.grp(reads(tiles, nn, 0, 0))
        a.grp(dma_chunk(grp, 2, 2))
        a.e("s_mov_b32 s%d, 0" % S_CNT)
        for last in (0, 1):
            lp = "LB_loop%d" % v
            if not last:
                a.label(lp)
            for c in range(3):
                a.e("s_waitcnt lgkmcnt(0)")
                interleave(a, mfmas(tiles, nn, 0), reads(tiles, nn, c, 1))
                if not last:
                    a.e("s_waitcnt vmcnt(5) lgkmcnt(0)")
                else:
                    a.e("s_waitcnt vmcnt(%d) lgkmcnt(0)" % (5 if c == 0 else 0))
                a.e("s_barrier")
                oth = []
                if not (last and c == 2):
                    oth = reads(tiles, nn, (c + 1) % 3, 0)
                if not last:
                    oth = oth + dma_chunk(grp, c, None)
                interleave(a, mfmas(tiles, nn, 1), oth)
            if not last:
                a.e("s_add_u32 s%d, s%d, 1" % (S_CNT, S_CNT))
                a.e("s_cmp_lt_u32 s%d, 7" % S_CNT)
                a.e("s_cbranch_scc1 %s" % lp)
        stampb(a, 1, dbg)
        a.e("s_nop 7")
        a.e("s_lshl_b32 s%d, s%d, 10" % (S_T0, S_NT0))
        a.e("v_add_u32 v%d, s%d, v%d" % (V_X1, S_T0, V_L16))
        for j, t in enumerate(tiles):
            a.e("s_mov_b32 s%d, %d" % (S_T3, t * 10240))
            for tau in range(nn):
                acc = V_ACC + (j * 3 + tau) * 4
                a.e("buffer_store_dwordx4 %s, v%d, s[%d:%d], s%d offen offset:%d" % (
                    vr(acc, 4), V_X1, S_PT, S_PT + 3, S_T3, tau * 1024))
        stampb(a, 2, dbg)
        if dbg:
            a.e("s_waitcnt vmcnt(0)")
            a.e("s_memrealtime s[%d:%d]" % (S_TM, S_TM + 1))
            a.e("s_waitcnt lgkmcnt(0)")
            a.e("v_mov_b32 v%d, s%d" % (V_TMP, S_TM))
            a.lines.append("    buffer_store_dword v%d, off, s[%d:%d], 0 offset:48" % (V_TMP, S_DBG, S_DBG + 3))
        a.e("s_endpgm")
    a.label("LB_end")
    a.e("s_endpgm")


def gen_reduce(a, opt):
    kn = "reduce_kernel"
    a.lines.append(".globl %s\n.p2align 8\n.type %s,@function" % (kn, kn))
    a.label(kn)
    a.e("s_cmp_ge_u32 s2, 1440")
    a.e("s_cbranch_scc1 LC_end")
    a.e("s_load_dwordx2 s[4:5], s[0:1], 96")
    a.e("s_load_dwordx2 s[6:7], s[0:1], 80")
    a.e("v_lshrrev_b32 v1, 6, v0")
    a.e("v_and_b32 v0, 63, v0")
    a.e("v_readfirstlane_b32 s20, v1")
    a.e("s_lshl_b32 s21, s2, 2")
    a.e("s_add_u32 s21, s21, s20")
    a.e("s_mul_hi_u32 s22, s21, 0x2d82d83")
    a.e("s_mul_i32 s23, s22, 90")
    a.e("s_sub_u32 s23, s21, s23")
    a.e("s_mul_i32 s24, s22, %d" % (4 * 92160))
    a.e("s_lshl_b32 s25, s23, 10")
    a.e("s_add_u32 s24, s24, s25")
    a.e("s_add_u32 s24, s24, 0x%x" % PART)
    a.e("v_lshlrev_b32 v2, 4, v0")
    a.e("v_add_u32 v2, s24, v2")
    a.e("s_waitcnt lgkmcnt(0)")
    a.e("s_mov_b32 s8, s4")
    a.e("s_mov_b32 s9, s5")
    a.e("s_mov_b32 s10, 0x10000000")
    a.e("s_mov_b32 s11, 0x20000")
    a.e("s_mov_b32 s12, s6")
    a.e("s_mov_b32 s13, s7")
    a.e("s_mov_b32 s14, 2949120")
    a.e("s_mov_b32 s15, 0x20000")
    for k in range(4):
        a.e("s_mov_b32 s26, %d" % (k * 92160))
        a.e("buffer_load_dwordx4 v[%d:%d], v2, s[8:11], s26 offen" % (4 + 4 * k, 7 + 4 * k))
    a.e("s_mul_i32 s25, s23, 103")
    a.e("s_lshr_b32 s25, s25, 10")
    a.e("s_mul_i32 s26, s25, 10")
    a.e("s_sub_u32 s26, s23, s26")
    a.e("s_and_b32 s27, s22, 3")
    a.e("s_lshr_b32 s28, s22, 2")
    a.e("s_and_b32 s29, s28, 7")
    a.e("s_lshr_b32 s28, s28, 3")
    a.e("s_mul_i32 s29, s29, 144")
    a.e("s_lshl_b32 s25, s25, 4")
    a.e("s_add_u32 s29, s29, s25")
    a.e("s_mul_i32 s29, s29, 2560")
    a.e("s_mul_i32 s28, s28, 1280")
    a.e("s_mul_i32 s27, s27, 320")
    a.e("s_lshl_b32 s26, s26, 5")
    a.e("s_add_u32 s29, s29, s28")
    a.e("s_add_u32 s29, s29, s27")
    a.e("s_add_u32 s29, s29, s26")
    a.e("v_and_b32 v3, 15, v0")
    a.e("v_mul_u32_u24 v3, 0xa00, v3")
    a.e("v_lshrrev_b32 v1, 4, v0")
    a.e("v_lshl_add_u32 v3, v1, 3, v3")
    a.e("s_waitcnt vmcnt(0)")
    for r in range(4):
        a.e("v_add_f32 v%d, v%d, v%d" % (4 + r, 4 + r, 8 + r))
        a.e("v_add_f32 v%d, v%d, v%d" % (12 + r, 12 + r, 16 + r))
    for r in range(4):
        a.e("v_add_f32 v%d, v%d, v%d" % (4 + r, 4 + r, 12 + r))
    a.e("v_cvt_pk_bf16_f32 v4, v4, v5")
    a.e("v_cvt_pk_bf16_f32 v5, v6, v7")
    a.e("buffer_store_dwordx2 v[4:5], v3, s[12:15], s29 offen")
    a.label("LC_end")
    a.e("s_endpgm")
```

```python
import sys, math, struct

NAME = "concat_heads__mha_block_cached__mha_block_cached__near_ridge"


class Asm:
    def __init__(self):
        self.lines = []
        self.uid = 0
        self.vm = []

    def e(self, s, tag=None):
        self.lines.append("    " + s)
        if s.startswith("buffer_") or s.startswith("global_"):
            self.vm.append(tag)

    def grp(self, groups):
        for g in groups:
            self.g1(g)

    def g1(self, g):
        for ins in g:
            if isinstance(ins, tuple):
                self.e(ins[0], ins[1])
            else:
                self.e(ins)

    def vmn(self, tag):
        idx = [i for i, t in enumerate(self.vm) if t == tag]
        assert idx, tag
        n = len(self.vm) - 1 - idx[-1]
        assert n <= 63, n
        return n

    def c(self, s):
        self.lines.append("    ; " + s)

    def label(self, l):
        self.lines.append(l + ":")

    def newlabel(self, p="L"):
        self.uid += 1
        return "%s_%d" % (p, self.uid)

    def text(self):
        return "\n".join(self.lines) + "\n"


def vr(b, n=1):
    return "v%d" % b if n == 1 else "v[%d:%d]" % (b, b + n - 1)


def f32(x):
    return struct.unpack("<I", struct.pack("<f", x))[0]


def interleave(a, mfmas, others, lead=1, span=None):
    n = len(mfmas) if span is None else min(span, len(mfmas))
    m = len(others)
    oi = 0
    for i, mf in enumerate(mfmas):
        a.e(mf)
        if i + 1 >= lead and oi < m:
            rem = max(n - i, 1)
            k = -(-(m - oi) // rem)
            for _ in range(k):
                a.g1(others[oi])
                oi += 1
    while oi < m:
        a.g1(others[oi])
        oi += 1


CH = 43008
XOFF, WOFF = 0, 18432
NCH = 3
KST = 57344
VBASE = 73728
VSLOT = 12288
NV = 7
PSLOT = 9216
REDB = 159744
LDS_A = 163840
O_TASK = 55296
MAXB = 55296
SUMB = 159744 - 512

S_X, S_W, S_K, S_V, S_O = 4, 8, 12, 16, 20
S_WAVE, S_WS, S_GRP = 24, 25, 26
S_T0, S_T1, S_T2, S_T3 = 27, 28, 29, 30
S_KX, S_KW = 31, 32
S_M0X, S_M0W = 33, 34
S_TYPE = 35
S_C = 36
S_M0K = 37
S_VR, S_PR, S_VW, S_VOFF, S_I = 38, 39, 40, 41, 42
S_CH = 43
S_PTR = 44
S_WSP = 52
S_P, S_B, S_H = 54, 55, 56
S_TQ = 57
S_RET = 58
S_DBG = 60
S_TM = 64

V_LANE, V_L16, V_VOFFV, V_TMP = 0, 1, 2, 3
V_QF = 4
V_S = 16
V_K = 160
V_ACC1, V_A1, V_B1 = 16, 76, 100
V_AD = 140
V_VX0, V_VX1, V_VW = 152, 153, 154
V_QW = 155
V_X1, V_X2, V_X3, V_X4 = 4, 5, 6, 7
V_VK0, V_VK1, V_KR0, V_KR1 = 8, 9, 10, 11
V_ACC3, V_A3 = 160, 220
V_B3 = (16, 52)
V_MC = 244
V_SUM = 4
V_T3B0, V_T3B1 = 13, 14
V_T3C0, V_T3C1, V_B3C = 15, 253, 254
V_Y = 255


def S(kt, t):
    return V_S + (kt * 9 + t) * 4


def Kf(kt, s):
    return V_K + (s * 4 + kt) * 4


def stamp(a, idx, dbg):
    if not dbg:
        return
    a.e("s_memtime s[%d:%d]" % (S_TM, S_TM + 1))
    a.e("s_waitcnt lgkmcnt(0)")
    a.e("v_mov_b32 v%d, s%d" % (dbg, S_TM))
    a.lines.append("    buffer_store_dword v%d, off, s[%d:%d], 0 offset:%d" % (dbg, S_DBG, S_DBG + 3, idx * 4))


def xlane_reduce(a, regs, tmps, op):
    for sw in ("v_permlane32_swap_b32", "v_permlane16_swap_b32"):
        for r, t in zip(regs, tmps):
            a.e("v_mov_b32 v%d, v%d" % (t, r))
        a.e("s_nop 1")
        for r, t in zip(regs, tmps):
            a.e("%s v%d, v%d" % (sw, r, t))
        a.e("s_nop 1")
        for r, t in zip(regs, tmps):
            a.e("%s v%d, v%d, v%d" % (op, r, r, t))


def gen_attn(a, opt):
    dbg = opt.get("dbg", False)
    kn = "attn_kernel"
    a.lines.append(".globl %s\n.p2align 8\n.type %s,@function" % (kn, kn))
    a.label(kn)
    a.e("s_cmp_ge_u32 s2, 512")
    a.e("s_cbranch_scc1 LA_end")
    a.e("s_and_b32 s%d, s2, 7" % S_T0)
    a.e("s_lshr_b32 s%d, s2, 3" % S_T1)
    a.e("s_lshr_b32 s%d, s%d, 2" % (S_P, S_T0))
    a.e("s_and_b32 s%d, s%d, 3" % (S_H, S_T0))
    a.e("s_lshl_b32 s%d, s%d, 3" % (S_H, S_H))
    a.e("s_and_b32 s%d, s%d, 7" % (S_T2, S_T1))
    a.e("s_add_u32 s%d, s%d, s%d" % (S_H, S_H, S_T2))
    a.e("s_lshr_b32 s%d, s%d, 3" % (S_B, S_T1))
    a.e("s_xor_b32 s%d, s%d, s%d" % (S_TYPE, S_T2, S_B))
    a.e("s_and_b32 s%d, s%d, 1" % (S_TYPE, S_TYPE))
    if "type" in opt:
        a.e("s_mov_b32 s%d, %d" % (S_TYPE, opt["type"]))
    a.e("s_lshr_b32 s%d, s%d, 1" % (S_CH, S_T2))
    a.e("s_mul_i32 s%d, s%d, 5" % (S_CH, S_CH))
    a.e("s_lshr_b32 s%d, s%d, 1" % (S_CH, S_CH))
    a.e("s_bfe_u32 s%d, s%d, 0x10001" % (S_T2, S_B))
    a.e("s_mul_i32 s%d, s%d, 5" % (S_T2, S_T2))
    a.e("s_add_u32 s%d, s%d, s%d" % (S_CH, S_CH, S_T2))
    a.e("s_sub_u32 s%d, s%d, 10" % (S_T2, S_CH))
    a.e("s_cmp_ge_u32 s%d, 10" % S_CH)
    a.e("s_cselect_b32 s%d, s%d, s%d" % (S_CH, S_T2, S_CH))
    if opt.get("norot"):
        a.e("s_mov_b32 s%d, 0" % S_CH)
    a.e("s_mul_i32 s%d, s%d, 40" % (S_T2, S_P))
    a.e("s_add_u32 s%d, s0, s%d" % (S_T0 + 1, S_T2))
    a.e("s_addc_u32 s%d, s1, 0" % (S_T0 + 2))
    a.e("s_load_dwordx8 s[%d:%d], s[%d:%d], 0" % (S_PTR, S_PTR + 7, S_T0 + 1, S_T0 + 2))
    a.e("s_load_dwordx2 s[%d:%d], s[0:1], 96" % (S_WSP, S_WSP + 1))
    a.e("v_lshrrev_b32 v%d, 6, v0" % V_TMP)
    a.e("v_and_b32 v0, 63, v0")
    a.e("v_readfirstlane_b32 s%d, v%d" % (S_WAVE, V_TMP))
    a.e("v_lshlrev_b32 v%d, 4, v0" % V_L16)
    a.e("v_lshrrev_b32 v%d, 4, v0" % V_X1)
    a.e("v_and_b32 v%d, 15, v0" % V_X2)
    a.e("s_and_b32 s%d, s%d, 3" % (S_WS, S_WAVE))
    a.e("s_lshr_b32 s%d, s%d, 2" % (S_GRP, S_WAVE))
    a.e("s_mov_b32 s%d, 0x%08x" % (S_C, f32((192 ** -0.5) * math.log2(math.e))))
    tr0, tr1, x0, x1 = V_AD, V_AD + 1, V_AD + 2, V_AD + 3
    a.e("v_mul_u32_u24 v%d, 0xc00, v%d" % (tr0, V_X1))
    a.e("v_and_b32 v%d, 1, v%d" % (V_X4, V_X1))
    a.e("v_lshl_add_u32 v%d, v%d, 7, v%d" % (tr0, V_X4, tr0))
    a.e("v_lshl_add_u32 v%d, v%d, 3, v%d" % (tr0, V_X2, tr0))
    a.e("s_mul_i32 s%d, s%d, 768" % (S_T3, S_WS))
    a.e("s_add_u32 s%d, s%d, 0x%x" % (S_T3, S_T3, WOFF))
    a.e("v_add_u32 v%d, s%d, v%d" % (tr0, S_T3, tr0))
    a.e("v_xor_b32 v%d, 0x80, v%d" % (tr1, tr0))
    a.e("v_lshrrev_b32 v%d, 1, v%d" % (V_X3, V_X2))
    a.e("v_xor_b32 v%d, v%d, v%d" % (V_X3, V_X3, V_X1))
    a.e("v_lshlrev_b32 v%d, 4, v%d" % (V_X3, V_X3))
    a.e("v_lshl_add_u32 v%d, v%d, 7, v%d" % (x0, V_X2, V_X3))
    a.e("v_xor_b32 v%d, 64, v%d" % (x1, x0))
    for sl in (1, 2):
        for k in range(4):
            a.e("v_add_u32 v%d, 0x%x, v%d" % (V_AD + 4 * sl + k, sl * CH, V_AD + k))
    a.e("s_mul_i32 s%d, s%d, 12288" % (S_M0K, S_WAVE))
    a.e("s_add_u32 s%d, s%d, 0x%x" % (S_M0K, S_M0K, KST))
    a.e("v_add_u32 v%d, s%d, v%d" % (V_KR0, S_M0K, x0))
    a.e("v_add_u32 v%d, s%d, v%d" % (V_KR1, S_M0K, x1))
    a.e("v_bfe_u32 v%d, v0, 3, 1" % V_X2)
    a.e("s_and_b32 s%d, s%d, 1" % (S_T3, S_WS))
    a.e("v_xor_b32 v%d, s%d, v%d" % (V_X2, S_T3, V_X2))
    a.e("v_bfe_u32 v%d, v0, 1, 2" % V_X3)
    a.e("v_lshl_add_u32 v%d, v%d, 2, v%d" % (V_X2, V_X2, V_X3))
    a.e("s_lshl_b32 s%d, s%d, 3" % (S_T3, S_WS))
    a.e("v_add_u32 v%d, s%d, v%d" % (V_X2, S_T3, V_X2))
    a.e("v_and_b32 v%d, 1, v0" % V_X3)
    a.e("v_lshlrev_b32 v%d, 4, v%d" % (V_X3, V_X3))
    a.e("v_lshl_add_u32 v%d, v%d, 5, v%d" % (V_X3, V_X1, V_X3))
    a.e("v_mul_u32_u24 v%d, 0x3000, v%d" % (V_VW, V_X2))
    a.e("v_add_u32 v%d, v%d, v%d" % (V_VW, V_VW, V_X3))
    a.e("v_mul_u32_u24 v%d, 0x180, v%d" % (V_VOFFV, V_X2))
    a.e("v_add_u32 v%d, v%d, v%d" % (V_VOFFV, V_VOFFV, V_X3))
    a.e("s_mul_i32 s%d, s%d, 3072" % (S_M0W, S_WS))
    a.e("s_mul_i32 s%d, s%d, 36" % (S_T3, S_WS))
    a.e("v_lshrrev_b32 v%d, 3, v0" % V_X2)
    a.e("v_add_u32 v%d, s%d, v%d" % (V_X2, S_T3, V_X2))
    a.e("v_bfe_u32 v%d, v%d, 1, 3" % (V_X3, V_X2))
    a.e("v_and_b32 v%d, 7, v0" % V_X4)
    a.e("v_xor_b32 v%d, v%d, v%d" % (V_X3, V_X3, V_X4))
    a.e("v_lshlrev_b32 v%d, 4, v%d" % (V_X3, V_X3))
    a.e("v_mul_u32_u24 v%d, 0x500, v%d" % (V_X2, V_X2))
    a.e("v_add_u32 v%d, v%d, v%d" % (V_VX0, V_X2, V_X3))
    a.e("v_xor_b32 v%d, 64, v%d" % (V_X3, V_X3))
    a.e("v_add_u32 v%d, v%d, v%d" % (V_VX1, V_X2, V_X3))
    a.e("s_mul_i32 s%d, s%d, 4608" % (S_M0X, S_WS))
    a.e("v_bfe_u32 v%d, v0, 5, 1" % V_X2)
    a.e("v_bfe_u32 v%d, v0, 3, 2" % V_X3)
    a.e("v_lshl_add_u32 v%d, v%d, 3, v%d" % (V_X2, V_X2, V_X3))
    a.e("v_mul_u32_u24 v%d, 0x180, v%d" % (V_X2, V_X2))
    a.e("s_mul_i32 s%d, s%d, 24576" % (S_T3, S_WAVE))
    a.e("v_add_u32 v%d, s%d, v%d" % (V_X2, S_T3, V_X2))
    a.e("v_xor_b32 v%d, v%d, v%d" % (V_X3, V_X4, V_X1))
    a.e("v_lshlrev_b32 v%d, 4, v%d" % (V_X3, V_X3))
    a.e("v_add_u32 v%d, v%d, v%d" % (V_VK0, V_X2, V_X3))
    a.e("v_xor_b32 v%d, 64, v%d" % (V_X3, V_X3))
    a.e("v_add_u32 v%d, v%d, v%d" % (V_VK1, V_X2, V_X3))
    a.e("v_add_u32 v%d, 0x%x, v%d" % (V_VK1, 16 * 384, V_VK1))

    def qw_addr(dst):
        a.e("v_and_b32 v%d, 15, v0" % (dst + 2))
        a.e("v_lshlrev_b32 v%d, 4, v%d" % (dst + 2, dst + 2))
        a.e("v_lshrrev_b32 v%d, 5, v0" % dst)
        a.e("v_lshl_add_u32 v%d, v%d, 8, v%d" % (dst + 2, dst, dst + 2))
        a.e("v_bfe_u32 v%d, v0, 4, 1" % dst)
        a.e("v_lshl_add_u32 v%d, v%d, 3, v%d" % (dst + 2, dst, dst + 2))
        for tau in range(3):
            a.e("s_mul_i32 s%d, s%d, 3" % (S_T3, S_WS))
            a.e("s_add_u32 s%d, s%d, %d" % (S_T3, S_T3, tau))
            a.e("s_lshr_b32 s%d, s%d, 1" % (S_TQ, S_T3))
            a.e("s_mul_i32 s%d, s%d, 9216" % (S_TQ, S_TQ))
            a.e("s_and_b32 s%d, s%d, 1" % (S_T3, S_T3))
            a.e("s_lshl_b32 s%d, s%d, 9" % (S_T3, S_T3))
            a.e("s_add_u32 s%d, s%d, s%d" % (S_T3, S_T3, S_TQ))
            a.e("v_add_u32 v%d, s%d, v%d" % (dst + tau, S_T3, dst + 2))
    qw_addr(V_QW)
    for i in range(60):
        a.e("v_mov_b32 v%d, 0" % (V_ACC1 + i))
    a.e("s_waitcnt lgkmcnt(0)")
    px, pk, pv, pw = S_PTR, S_PTR + 2, S_PTR + 4, S_PTR + 6
    a.e("s_mul_i32 s%d, s%d, 184320" % (S_T3, S_B))
    a.e("s_add_u32 s%d, s%d, s%d" % (S_X, px, S_T3))
    a.e("s_addc_u32 s%d, s%d, 0" % (S_X + 1, px + 1))
    a.e("s_mov_b32 s%d, 184320" % (S_X + 2))
    a.e("s_mov_b32 s%d, 0x20000" % (S_X + 3))
    a.e("s_mul_i32 s%d, s%d, 384" % (S_T3, S_H))
    a.e("s_add_u32 s%d, s%d, s%d" % (S_W, pw, S_T3))
    a.e("s_addc_u32 s%d, s%d, 0" % (S_W + 1, pw + 1))
    a.e("s_sub_u32 s%d, 7864320, s%d" % (S_W + 2, S_T3))
    a.e("s_mov_b32 s%d, 0x20000" % (S_W + 3))
    a.e("s_lshl_b32 s%d, s%d, 5" % (S_T3, S_B))
    a.e("s_add_u32 s%d, s%d, s%d" % (S_T3, S_T3, S_H))
    a.e("s_lshl_b32 s%d, s%d, 8" % (S_TQ, S_P))
    a.e("s_add_u32 s%d, s%d, s%d" % (S_TQ, S_TQ, S_T3))
    a.e("s_mul_i32 s%d, s%d, %d" % (S_TQ, S_TQ, O_TASK))
    a.e("s_add_u32 s%d, s%d, s%d" % (S_O, S_WSP, S_TQ))
    a.e("s_addc_u32 s%d, s%d, 0" % (S_O + 1, S_WSP + 1))
    a.e("s_mov_b32 s%d, %d" % (S_O + 2, O_TASK))
    a.e("s_mov_b32 s%d, 0x20000" % (S_O + 3))
    a.e("s_mul_i32 s%d, s%d, 196608" % (S_T3, S_T3))
    for srd, p in ((S_K, pk), (S_V, pv)):
        a.e("s_add_u32 s%d, s%d, s%d" % (srd, p, S_T3))
        a.e("s_addc_u32 s%d, s%d, 0" % (srd + 1, p + 1))
        a.e("s_mov_b32 s%d, 196608" % (srd + 2))
        a.e("s_mov_b32 s%d, 0x20000" % (srd + 3))
    a.e("s_lshl_b32 s%d, s%d, 7" % (S_KX, S_CH))
    a.e("s_mul_i32 s%d, s%d, 0xc0000" % (S_KW, S_CH))
    if dbg:
        a.e("s_lshl_b32 s%d, s2, 3" % S_T3)
        a.e("s_add_u32 s%d, s%d, s%d" % (S_T3, S_T3, S_WAVE))
        a.e("s_lshl_b32 s%d, s%d, 7" % (S_T3, S_T3))
        a.e("s_add_u32 s%d, s%d, 0x4000000" % (S_T3, S_T3))
        a.e("s_add_u32 s%d, s%d, s%d" % (S_DBG, S_WSP, S_T3))
        a.e("s_addc_u32 s%d, s%d, 0" % (S_DBG + 1, S_WSP + 1))
        a.e("s_mov_b32 s%d, 128" % (S_DBG + 2))
        a.e("s_mov_b32 s%d, 0x20000" % (S_DBG + 3))
    dbgv = V_TMP if dbg else None
    NT = " nt" if opt.get("nt", True) else ""

    def k_block():
        a.vm = []
        pairs = [(kt, cg) for kt in range(4) for cg in range(3)]

        def issue(p):
            kt, cg = pairs[p]
            ub, half = kt >> 1, kt & 1
            a.e("s_mov_b32 s%d, 0x%x" % (S_T3, ub * 12288 + half * 1536 + cg * 128))
            for hh in range(2):
                a.e("s_add_u32 m0, s%d, 0x%x" % (S_M0K, (p % 6) * 2048 + hh * 1024))
                a.e("s_nop 0")
                if not opt.get("nok"):
                    a.e("buffer_load_dwordx4 v%d, s[%d:%d], s%d offen%s lds" % (
                        (V_VK0, V_VK1)[hh], S_K, S_K + 3, S_T3, NT), ("k", p))
        for p in range(6):
            issue(p)
        for p in range(12):
            kt, cg = pairs[p]
            if not opt.get("nok"):
                a.e("s_waitcnt vmcnt(%d)" % a.vmn(("k", p)))
            a.e("ds_read_b128 %s, v%d offset:%d" % (vr(Kf(kt, 2 * cg), 4), V_KR0, (p % 6) * 2048))
            a.e("ds_read_b128 %s, v%d offset:%d" % (vr(Kf(kt, 2 * cg + 1), 4), V_KR1, (p % 6) * 2048))
            if p >= 1 and p + 5 < 12:
                a.e("s_waitcnt lgkmcnt(2)")
                issue(p + 5)
        a.e("s_waitcnt lgkmcnt(0)")
        a.e("s_barrier")

    def dma_chunk(grp, slot, tag):
        L = []
        base = slot * CH
        if grp == 1:
            for n in range(5):
                g = ["s_add_u32 m0, s%d, 0x%x" % (S_M0X, base + XOFF + 1024 * n),
                     "s_add_u32 s%d, s%d, 0x%x" % (S_T3, S_KX, n * 10240)]
                if n == 4:
                    g.append("s_mov_b32 exec_hi, 0")
                if not opt.get("nox"):
                    g.append(("buffer_load_dwordx4 v%d, s[%d:%d], s%d offen lds" % (
                        (V_VX0, V_VX1)[n & 1], S_X, S_X + 3, S_T3), tag))
                if n == 4:
                    g.append("s_mov_b32 exec_hi, -1")
                L.append(g)
            L.append(["s_add_u32 s%d, s%d, 128" % (S_KX, S_KX),
                      "s_cmp_ge_u32 s%d, 1280" % S_KX,
                      "s_cselect_b32 s%d, 0, s%d" % (S_KX, S_KX)])
        else:
            for kh in range(2):
                for cg in range(3):
                    g = ["s_add_u32 m0, s%d, 0x%x" % (S_M0W, base + WOFF + kh * 12288 + 1024 * cg - 128 * cg),
                         "s_nop 0"]
                    if not opt.get("now"):
                        g.append(("buffer_load_dwordx4 v%d, s[%d:%d], s%d offen offset:%d lds" % (
                            V_VW, S_W, S_W + 3, S_KW, 128 * cg), tag))
                    L.append(g)
                L.append(["s_add_u32 s%d, s%d, 0x60000" % (S_KW, S_KW)])
            L.append(["s_cmp_ge_u32 s%d, 0x780000" % S_KW,
                      "s_cselect_b32 s%d, 0, s%d" % (S_KW, S_KW)])
        return L

    def v_dma_const(tile, slot):
        goff = (tile & 7) * 24576 + (tile >> 3) * 12288
        L = []
        if opt.get("nov"):
            return L
        for cg in range(3):
            L.append(["s_add_u32 m0, s%d, 0x%x" % (S_M0W, VBASE + slot * VSLOT + 1024 * cg - 128 * cg),
                      "s_mov_b32 s%d, 0x%x" % (S_T3, goff),
                      "buffer_load_dwordx4 v%d, s[%d:%d], s%d offen offset:%d%s lds" % (
                          V_VOFFV, S_V, S_V + 3, S_T3, 128 * cg, NT)])
        return L

    def p1_reads(tiles, step):
        c, kh = step >> 1, step & 1
        fset = step & 1
        ad = V_AD + 4 * (c % NCH)
        L = []
        for tau in range(3):
            d = V_A1 + fset * 12 + tau * 4
            L.append(["ds_read_b64_tr_b16 %s, v%d offset:%d" % (vr(d, 2), ad, kh * 12288 + tau * 256)])
            L.append(["ds_read_b64_tr_b16 %s, v%d offset:%d" % (vr(d + 2, 2), ad + 1, kh * 12288 + tau * 256)])
        for j, t in enumerate(tiles):
            d = V_B1 + fset * 20 + j * 4
            L.append(["ds_read_b128 %s, v%d offset:%d" % (vr(d, 4), ad + 2 + kh, XOFF + t * 2048)])
        return L

    def p1_mfmas(tiles, fset):
        M = []
        for j, t in enumerate(tiles):
            for tau in range(3):
                acc = V_ACC1 + (j * 3 + tau) * 4
                M.append("v_mfma_f32_16x16x32_bf16 %s, %s, %s, %s" % (
                    vr(acc, 4), vr(V_A1 + fset * 12 + tau * 4, 4), vr(V_B1 + fset * 20 + j * 4, 4), vr(acc, 4)))
        return M

    def vmwait(tag, extra=""):
        if tag in a.vm:
            a.e("s_waitcnt vmcnt(%d)%s" % (a.vmn(tag), extra))
        elif extra:
            a.e("s_waitcnt" + extra)

    stamp(a, 0, dbgv)
    if dbg:
        a.e("s_getreg_b32 s%d, hwreg(HW_REG_XCC_ID)" % S_T3)
        a.e("v_mov_b32 v%d, s%d" % (V_TMP, S_T3))
        a.lines.append("    buffer_store_dword v%d, off, s[%d:%d], 0 offset:60" % (V_TMP, S_DBG, S_DBG + 3))
        a.e("s_getreg_b32 s%d, hwreg(HW_REG_HW_ID)" % S_T3)
        a.e("s_nop 1")
        a.e("v_mov_b32 v%d, s%d" % (V_TMP, S_T3))
        a.lines.append("    buffer_store_dword v%d, off, s[%d:%d], 0 offset:56" % (V_TMP, S_DBG, S_DBG + 3))
        a.e("s_memrealtime s[%d:%d]" % (S_TM, S_TM + 1))
        a.e("s_waitcnt lgkmcnt(0)")
        a.e("v_mov_b32 v%d, s%d" % (V_TMP, S_TM))
        a.lines.append("    buffer_store_dword v%d, off, s[%d:%d], 0 offset:52" % (V_TMP, S_DBG, S_DBG + 3))
    a.e("s_cmp_eq_u32 s%d, 0" % S_TYPE)
    a.e("s_cbranch_scc1 LA_p1")
    a.label("LA_kb")
    k_block()
    stamp(a, 1, dbgv)
    a.e("s_cmp_eq_u32 s%d, 0" % S_TYPE)
    a.e("s_cbranch_scc1 LA_p2")
    a.label("LA_p1")
    a.e("s_cmp_eq_u32 s%d, 0" % S_GRP)
    a.e("s_cbranch_scc0 LA_p1_g1")
    for grp in (0, 1):
        a.vm = []
        tiles = [5, 6, 7, 8] if grp == 0 else [0, 1, 2, 3, 4]
        if grp == 1:
            a.label("LA_p1_g1")
        for c in range(3):
            a.grp(dma_chunk(grp, c, c))
        vmwait(0)
        a.e("s_barrier")
        a.grp(p1_reads(tiles, 0))
        for step in range(20):
            c = step >> 1
            oth = []
            if step & 1:
                if c + 1 < 10:
                    vmwait(c + 1, " lgkmcnt(0)")
                else:
                    a.e("s_waitcnt lgkmcnt(0)")
                a.e("s_barrier")
                if opt.get("dbg2"):
                    a.e("s_memtime s[%d:%d]" % (66 + 2 * c, 67 + 2 * c))
            else:
                a.e("s_waitcnt lgkmcnt(0)")
            if step + 1 < 20:
                oth = p1_reads(tiles, step + 1)
            if (step & 1) and c + 3 < 10:
                oth = oth + dma_chunk(grp, c % NCH, c + 3)
            interleave(a, p1_mfmas(tiles, step & 1), oth)
        a.e("s_nop 7")
        for j, t in enumerate(tiles):
            for tau in range(3):
                acc = V_ACC1 + (j * 3 + tau) * 4
                a.e("v_cvt_pk_bf16_f32 v%d, v%d, v%d" % (acc, acc, acc + 1))
                a.e("v_cvt_pk_bf16_f32 v%d, v%d, v%d" % (acc + 1, acc + 2, acc + 3))
                a.e("ds_write_b64 v%d, %s offset:%d" % (V_QW + tau, vr(acc, 2), t * 1024))
        a.e("s_waitcnt lgkmcnt(0)")
        if grp == 0:
            a.e("s_branch LA_p1_done")
    a.label("LA_p1_done")
    stamp(a, 2, dbgv)
    if opt.get("dbg2"):
        for c in range(10):
            a.e("v_mov_b32 v%d, s%d" % (V_TMP, 66 + 2 * c))
            a.lines.append("    buffer_store_dword v%d, off, s[%d:%d], 0 offset:%d" % (V_TMP, S_DBG, S_DBG + 3, 64 + 4 * c))
    a.e("s_cmp_eq_u32 s%d, 0" % S_TYPE)
    a.e("s_cbranch_scc1 LA_kb")
    a.e("s_barrier")
    a.label("LA_p2")
    stamp(a, 3, dbgv)
    a.e("s_cmp_eq_u32 s%d, 0" % S_GRP)
    a.e("s_cbranch_scc1 LA_p2_go")
    for tl in range(NV):
        a.grp(v_dma_const(tl, tl))
    a.label("LA_p2_go")
    seq = [(s, t) for s in range(6) for t in range(9)]

    def qread(i):
        s, t = seq[i]
        return "ds_read_b128 %s, v%d offset:%d" % (vr(V_QF + (i % 3) * 4, 4), V_L16, (s * 9 + t) * 1024)
    a.e(qread(0))
    a.e(qread(1))
    for i, (s, t) in enumerate(seq):
        if i + 2 < len(seq):
            a.e(qread(i + 2))
            a.e("s_waitcnt lgkmcnt(2)")
        elif i + 1 < len(seq):
            a.e("s_waitcnt lgkmcnt(1)")
        else:
            a.e("s_waitcnt lgkmcnt(0)")
        for kt in range(4):
            cc = "0" if s == 0 else vr(S(kt, t), 4)
            a.e("v_mfma_f32_16x16x32_bf16 %s, %s, %s, %s" % (
                vr(S(kt, t), 4), vr(Kf(kt, s), 4), vr(V_QF + (i % 3) * 4, 4), cc))
    stamp(a, 4, dbgv)
    RT = 160
    a.e("v_and_b32 v%d, 15, v0" % V_Y)
    a.e("v_lshlrev_b32 v%d, 5, v%d" % (V_Y, V_Y))
    a.e("s_lshl_b32 s%d, s%d, 2" % (S_T3, S_WAVE))
    a.e("v_add_u32 v%d, s%d, v%d" % (V_TMP, S_T3, V_Y))
    a.e("s_nop 4")
    vals = lambda t: [S(kt, t) + r for kt in range(4) for r in range(4)]
    for step in range(8):
        for t in range(9):
            v = vals(t)
            if step == 0:
                a.e("v_max3_f32 v%d, v%d, v%d, v%d" % (V_MC + t, v[0], v[1], v[2]))
            elif step < 7:
                a.e("v_max3_f32 v%d, v%d, v%d, v%d" % (V_MC + t, V_MC + t, v[1 + 2 * step], v[2 + 2 * step]))
            else:
                a.e("v_max_f32 v%d, v%d, v%d" % (V_MC + t, V_MC + t, v[15]))
    xlane_reduce(a, [V_MC + t for t in range(9)], [RT + t for t in range(9)], "v_max_f32")
    for t in range(9):
        a.e("ds_write_b32 v%d, v%d offset:%d" % (V_TMP, V_MC + t, MAXB + t * 512))
    a.e("s_waitcnt lgkmcnt(0)")
    a.e("s_barrier")
    for t in range(9):
        a.e("ds_read_b128 %s, v%d offset:%d" % (vr(RT + t * 8, 4), V_Y, MAXB + t * 512))
        a.e("ds_read_b128 %s, v%d offset:%d" % (vr(RT + t * 8 + 4, 4), V_Y, MAXB + t * 512 + 16))
    a.e("v_lshrrev_b32 v%d, 4, v0" % V_T3C0)
    a.e("v_mul_u32_u24 v%d, 0xc00, v%d" % (V_T3B0, V_T3C0))
    a.e("v_and_b32 v%d, 1, v%d" % (V_T3C0, V_T3C0))
    a.e("v_lshl_add_u32 v%d, v%d, 7, v%d" % (V_T3B0, V_T3C0, V_T3B0))
    a.e("v_and_b32 v%d, 15, v0" % V_T3C0)
    a.e("v_lshl_add_u32 v%d, v%d, 3, v%d" % (V_T3B0, V_T3C0, V_T3B0))
    a.e("s_mul_i32 s%d, s%d, 768" % (S_T3, S_WS))
    a.e("s_add_u32 s%d, s%d, 0x%x" % (S_T3, S_T3, VBASE))
    a.e("v_add_u32 v%d, s%d, v%d" % (V_T3B0, S_T3, V_T3B0))
    a.e("v_xor_b32 v%d, 0x80, v%d" % (V_T3B1, V_T3B0))
    a.e("s_mul_i32 s%d, s%d, %d" % (S_T3, S_WAVE, PSLOT))
    a.e("v_add_u32 v%d, s%d, v%d" % (V_TMP, S_T3, V_L16))
    a.e("s_waitcnt lgkmcnt(0)")
    a.e("s_barrier")
    for t in range(9):
        b = RT + t * 8
        a.e("v_max3_f32 v%d, v%d, v%d, v%d" % (b, b, b + 1, b + 2))
        a.e("v_max3_f32 v%d, v%d, v%d, v%d" % (b + 3, b + 3, b + 4, b + 5))
        a.e("v_max3_f32 v%d, v%d, v%d, v%d" % (b, b, b + 6, b + 7))
    for t in range(9):
        b = RT + t * 8
        a.e("v_max_f32 v%d, v%d, v%d" % (b, b, b + 3))
    for t in range(9):
        a.e("v_mul_f32 v%d, s%d, v%d" % (V_MC + t, S_C, RT + t * 8))
    for ub in range(2):
        for t in range(9):
            v = [S(kt, t) + r for kt in (2 * ub, 2 * ub + 1) for r in range(4)]
            for x in v:
                a.e("v_fma_f32 v%d, v%d, s%d, -v%d" % (x, x, S_C, V_MC + t))
            for x in v:
                a.e("v_exp_f32 v%d, v%d" % (x, x))
            a.e("s_nop 0")
            for k in range(4):
                a.e("v_add_f32 v%d, v%d, v%d" % (RT + k, v[2 * k], v[2 * k + 1]))
            d = S(2 * ub, t)
            for k in range(4):
                a.e("v_cvt_pk_bf16_f32 v%d, v%d, v%d" % (d + k, v[2 * k], v[2 * k + 1]))
            a.e("v_add_f32 v%d, v%d, v%d" % (RT, RT, RT + 1))
            a.e("v_add_f32 v%d, v%d, v%d" % (RT + 2, RT + 2, RT + 3))
            if ub == 0:
                a.e("ds_write_b128 v%d, %s offset:%d" % (V_TMP, vr(d, 4), t * 1024))
                a.e("v_add_f32 v%d, v%d, v%d" % (V_SUM + t, RT, RT + 2))
            else:
                a.e("v_add_f32 v%d, v%d, v%d" % (RT, RT, RT + 2))
                a.e("v_add_f32 v%d, v%d, v%d" % (V_SUM + t, V_SUM + t, RT))
    xlane_reduce(a, [V_SUM + t for t in range(9)], [RT + t for t in range(9)], "v_add_f32")
    for i in range(60):
        a.e("v_mov_b32 v%d, 0" % (V_ACC3 + i))
    stamp(a, 5, V_B3C if dbg else None)
    a.e("s_mov_b32 s%d, 0" % S_I)
    a.e("s_mov_b32 s%d, 0" % S_VR)
    a.e("s_mov_b32 s%d, 0" % S_PR)
    a.e("v_mov_b32 v%d, v%d" % (V_T3C0, V_T3B0))
    a.e("v_mov_b32 v%d, v%d" % (V_T3C1, V_T3B1))
    a.e("v_mov_b32 v%d, v%d" % (V_B3C, V_L16))
    a.e("s_cmp_eq_u32 s%d, 0" % S_GRP)
    a.e("s_cbranch_scc0 LA_p3_g1")

    def p3_reads(tiles, fset):
        L = []
        for tau in range(3):
            d = V_A3 + fset * 12 + tau * 4
            L.append(["ds_read_b64_tr_b16 %s, v%d offset:%d" % (vr(d, 2), V_T3C0, tau * 256)])
            L.append(["ds_read_b64_tr_b16 %s, v%d offset:%d" % (vr(d + 2, 2), V_T3C1, tau * 256)])
        for j, t in enumerate(tiles):
            d = V_B3[fset] + j * 4
            L.append(["ds_read_b128 %s, v%d offset:%d" % (vr(d, 4), V_B3C, t * 1024)])
        return L

    def p3_adv():
        return [["s_mov_b32 s%d, s%d" % (S_VW, S_VR),
                 "s_add_u32 s%d, s%d, 0x%x" % (S_VR, S_VR, VSLOT),
                 "s_cmp_ge_u32 s%d, 0x%x" % (S_VR, NV * VSLOT),
                 "s_cselect_b32 s%d, 0, s%d" % (S_VR, S_VR),
                 "s_add_u32 s%d, s%d, 0x%x" % (S_PR, S_PR, PSLOT),
                 "s_cmp_ge_u32 s%d, 0x%x" % (S_PR, 8 * PSLOT),
                 "s_cselect_b32 s%d, 0, s%d" % (S_PR, S_PR),
                 "v_add_u32 v%d, s%d, v%d" % (V_T3C0, S_VR, V_T3B0),
                 "v_add_u32 v%d, s%d, v%d" % (V_T3C1, S_VR, V_T3B1),
                 "v_add_u32 v%d, s%d, v%d" % (V_B3C, S_PR, V_L16)]]

    def p3_mfmas(tiles, fset):
        M = []
        for j, t in enumerate(tiles):
            for tau in range(3):
                acc = V_ACC3 + (j * 3 + tau) * 4
                M.append("v_mfma_f32_16x16x32_bf16 %s, %s, %s, %s" % (
                    vr(acc, 4), vr(V_A3 + fset * 12 + tau * 4, 4), vr(V_B3[fset] + j * 4, 4), vr(acc, 4)))
        return M

    def p3_dma():
        L = [["s_add_u32 s%d, s%d, %d" % (S_T0, S_I, NV),
              "s_and_b32 s%d, s%d, 7" % (S_T1, S_T0),
              "s_mul_i32 s%d, s%d, 24576" % (S_T1, S_T1),
              "s_lshr_b32 s%d, s%d, 3" % (S_T2, S_T0),
              "s_mul_i32 s%d, s%d, 12288" % (S_T2, S_T2),
              "s_add_u32 s%d, s%d, s%d" % (S_VOFF, S_T1, S_T2),
              "s_cmp_ge_u32 s%d, 16" % S_T0,
              "s_cselect_b32 s%d, 0x100000, s%d" % (S_VOFF, S_VOFF),
              "s_add_u32 s%d, s%d, s%d" % (S_T0, S_VW, S_M0W)]]
        for cg in range(3):
            if opt.get("nov"):
                continue
            L.append(["s_add_u32 m0, s%d, 0x%x" % (S_T0, VBASE + 1024 * cg - 128 * cg), "s_nop 0",
                      "buffer_load_dwordx4 v%d, s[%d:%d], s%d offen offset:%d%s lds" % (
                          V_VOFFV, S_V, S_V + 3, S_VOFF, 128 * cg, NT)])
        return L

    for grp in (0, 1):
        tiles = [0, 1, 2, 3, 4] if grp == 0 else [5, 6, 7, 8]
        if grp == 1:
            a.label("LA_p3_g1")
            a.e("s_waitcnt vmcnt(18) lgkmcnt(0)")
        else:
            a.e("s_waitcnt lgkmcnt(0)")
        a.e("s_barrier")
        a.grp(p3_reads(tiles, 0) + p3_adv())
        lp = "LA_p3_loop%d" % grp
        a.label(lp)
        for u in range(2):
            if grp == 1:
                a.e("s_waitcnt vmcnt(15) lgkmcnt(0)")
            else:
                a.e("s_waitcnt lgkmcnt(0)")
            a.e("s_barrier")
            oth = p3_reads(tiles, (u + 1) & 1)
            if grp == 1:
                oth = oth + p3_dma()
            oth = oth + p3_adv()
            interleave(a, p3_mfmas(tiles, u), oth)
            l = a.newlabel("LA_pw")
            a.e("s_cmp_eq_u32 s%d, s%d" % (S_I, S_WAVE))
            a.e("s_cbranch_scc0 %s" % l)
            for t in range(9):
                a.e("ds_write_b128 v%d, %s offset:%d" % (V_TMP, vr(S(2, t), 4), t * 1024))
            a.label(l)
            if u == 1:
                l = a.newlabel("LA_sw")
                a.e("s_cmp_eq_u32 s%d, 9" % S_I)
                a.e("s_cbranch_scc0 %s" % l)
                a.e("s_lshl_b32 s%d, s%d, 2" % (S_T3, S_WAVE))
                a.e("v_add_u32 v%d, s%d, v%d" % (V_TMP, S_T3, V_Y))
                for t in range(9):
                    a.e("ds_write_b32 v%d, v%d offset:%d" % (V_TMP, V_SUM + t, t * 512))
                a.label(l)
            a.e("s_add_u32 s%d, s%d, 1" % (S_I, S_I))
        a.e("s_cmp_lt_u32 s%d, 16" % S_I)
        a.e("s_cbranch_scc1 %s" % lp)
        stamp(a, 6, V_TMP if dbg else None)
        ST = 88
        for j, t in enumerate(tiles):
            a.e("ds_read_b128 %s, v%d offset:%d" % (vr(ST + j * 8, 4), V_Y, t * 512))
            a.e("ds_read_b128 %s, v%d offset:%d" % (vr(ST + j * 8 + 4, 4), V_Y, t * 512 + 16))
        qw_addr(V_SUM)
        OB = 9216
        a.e("s_waitcnt lgkmcnt(0)")
        for j, t in enumerate(tiles):
            b = ST + j * 8
            for k in range(4):
                a.e("v_add_f32 v%d, v%d, v%d" % (b + k, b + k, b + k + 4))
        for j, t in enumerate(tiles):
            b = ST + j * 8
            a.e("v_add_f32 v%d, v%d, v%d" % (b, b, b + 1))
            a.e("v_add_f32 v%d, v%d, v%d" % (b + 2, b + 2, b + 3))
        for j, t in enumerate(tiles):
            b = ST + j * 8
            a.e("v_add_f32 v%d, v%d, v%d" % (b, b, b + 2))
        for j, t in enumerate(tiles):
            a.e("v_rcp_f32 v%d, v%d" % (ST + j * 8, ST + j * 8))
        a.e("s_nop 0")
        for j, t in enumerate(tiles):
            for tau in range(3):
                acc = V_ACC3 + (j * 3 + tau) * 4
                for r in range(4):
                    a.e("v_mul_f32 v%d, v%d, v%d" % (acc + r, acc + r, ST + j * 8))
                a.e("v_cvt_pk_bf16_f32 v%d, v%d, v%d" % (acc, acc, acc + 1))
                a.e("v_cvt_pk_bf16_f32 v%d, v%d, v%d" % (acc + 1, acc + 2, acc + 3))
                a.e("ds_write_b64 v%d, %s offset:%d" % (V_SUM + tau, vr(acc, 2), OB + t * 1024))
        a.e("s_waitcnt lgkmcnt(0)")
        if grp == 0:
            a.e("s_branch LA_out")
    a.label("LA_out")
    a.e("s_barrier")
    a.e("s_mul_i32 s%d, s%d, 7168" % (S_T3, S_WAVE))
    a.e("v_add_u32 v%d, s%d, v%d" % (V_TMP, S_T3, V_L16))
    for k in range(7):
        a.e("ds_read_b128 %s, v%d offset:%d" % (vr(16 + 4 * k, 4), V_TMP, 9216 + k * 1024))
    ONT = " nt" if opt.get("ont") else ""
    for k in range(7):
        a.e("s_waitcnt lgkmcnt(%d)" % (6 - k))
        a.e("s_mov_b32 s%d, %d" % (S_T3, k * 1024))
        a.e("buffer_store_dwordx4 %s, v%d, s[%d:%d], s%d offen%s" % (vr(16 + 4 * k, 4), V_TMP, S_O, S_O + 3, S_T3, ONT))
    stamp(a, 7, V_Y if dbg else None)
    if dbg:
        a.e("s_waitcnt vmcnt(0)")
        a.e("s_memrealtime s[%d:%d]" % (S_TM, S_TM + 1))
        a.e("s_waitcnt lgkmcnt(0)")
        a.e("v_mov_b32 v%d, s%d" % (V_TMP, S_TM))
        a.lines.append("    buffer_store_dword v%d, off, s[%d:%d], 0 offset:48" % (V_TMP, S_DBG, S_DBG + 3))
    a.e("s_waitcnt vmcnt(0)")
    a.label("LA_end")
    a.e("s_endpgm")


def kd(name, vgpr, sgpr=102):
    return """.amdhsa_kernel %s
  .amdhsa_next_free_vgpr %d
  .amdhsa_next_free_sgpr %d
  .amdhsa_accum_offset %d
  .amdhsa_group_segment_fixed_size 0
  .amdhsa_kernarg_size 104
  .amdhsa_user_sgpr_count 2
  .amdhsa_user_sgpr_kernarg_segment_ptr 1
  .amdhsa_system_sgpr_workgroup_id_x 1
.end_amdhsa_kernel
""" % (name, vgpr, sgpr, (vgpr + 3) // 4 * 4)


def build(opt):
    a = Asm()
    hdr = open("cdna_kernels/%s.s.ref" % NAME).read().splitlines()
    hdr = [l for l in hdr if l.startswith(";") and "@launch" not in l and "Override" not in l and "grid=ceil" not in l]
    import genb
    launches = ["; @launch kernel=attn_kernel grid=(512,1,1) block=(512,1,1) lds=%d" % LDS_A,
                "; @launch kernel=oproj_kernel grid=(256,1,1) block=(512,1,1) lds=%d" % genb.LDS_B,
                "; @launch kernel=reduce_kernel grid=(1440,1,1) block=(256,1,1) lds=0"]
    out = "\n".join(hdr + launches) + "\n"
    out += '.amdgcn_target "amdgcn-amd-amdhsa--gfx950"\n.text\n'
    gen_attn(a, opt)
    genb.gen_oproj(a, opt)
    genb.gen_reduce(a, opt)
    out += a.text()
    out += '.section .rodata,"a"\n.p2align 6\n'
    out += kd("attn_kernel", 256)
    out += ".p2align 6\n" + kd("oproj_kernel", genb.NVGPR_B)
    out += ".p2align 6\n" + kd("reduce_kernel", 24, 32)
    return out


if __name__ == "__main__":
    opt = {}
    outp = "k.s"
    for arg in sys.argv[1:]:
        if "=" in arg:
            k, v = arg.split("=")
            if k == "out":
                outp = v
            else:
                opt[k] = int(v)
    open(outp, "w").write(build(opt))
```

```python
from gen import Asm, vr, interleave, O_TASK

CHB = 38912
OOFF, WOFFB = 0, 18432
NCHB = 3
LDS_B = NCHB * CHB
FLAGS = 0x3f00000
SLAB = 65536
PART = 0x2000000

S_O, S_W, S_PT = 4, 8, 12
S_WAVE, S_WS, S_GRP = 24, 25, 26
S_T0, S_T1, S_T2, S_T3 = 27, 28, 29, 30
S_KO, S_KW = 31, 32
S_M0O, S_M0W = 33, 34
S_CNT = 35
S_P, S_KS, S_B, S_NB = 36, 37, 38, 39
S_PTR = 40
S_WSP = 42
S_CH = 44
S_NT0 = 45
S_DBG = 60
S_TM = 64
S_OD = 48
S_OUT, S_FL = 16, 20
S_TILE = 46
S_SRC = 52

V_L16, V_TMP = 1, 3
V_X1, V_X2, V_X3, V_X4 = 4, 5, 6, 7
V_VW = 8
V_VO = 13
V_AD = 16
V_ACC, V_A, V_B = 28, 88, 112
NVGPR_B = 152


def stampb(a, idx, dbg):
    if not dbg:
        return
    a.e("s_memtime s[%d:%d]" % (S_TM, S_TM + 1))
    a.e("s_waitcnt lgkmcnt(0)")
    a.e("v_mov_b32 v%d, s%d" % (V_TMP, S_TM))
    a.lines.append("    buffer_store_dword v%d, off, s[%d:%d], 0 offset:%d" % (V_TMP, S_DBG, S_DBG + 3, idx * 4))


def gen_oproj(a, opt):
    dbg = opt.get("dbgb", False)
    kn = "oproj_kernel"
    a.lines.append(".globl %s\n.p2align 8\n.type %s,@function" % (kn, kn))
    a.label(kn)
    a.e("s_cmp_ge_u32 s2, 256")
    a.e("s_cbranch_scc1 LB_end")
    a.e("s_and_b32 s%d, s2, 7" % S_T0)
    a.e("s_lshr_b32 s%d, s2, 3" % S_T1)
    a.e("s_lshr_b32 s%d, s%d, 2" % (S_P, S_T0))
    a.e("s_and_b32 s%d, s%d, 3" % (S_KS, S_T0))
    a.e("s_and_b32 s%d, s%d, 3" % (S_NB, S_T1))
    a.e("s_lshr_b32 s%d, s%d, 2" % (S_B, S_T1))
    a.e("s_lshl_b32 s%d, s%d, 1" % (S_CH, S_NB))
    a.e("s_add_u32 s%d, s%d, s%d" % (S_CH, S_CH, S_B))
    a.e("s_and_b32 s%d, s%d, 7" % (S_CH, S_CH))
    a.e("s_mul_i32 s%d, s%d, 3" % (S_CH, S_CH))
    if opt.get("norotb", 1):
        a.e("s_mov_b32 s%d, 0" % S_CH)
    a.e("s_mul_i32 s%d, s%d, 40" % (S_T2, S_P))
    a.e("s_add_u32 s%d, s0, s%d" % (S_T0 + 1, S_T2))
    a.e("s_addc_u32 s%d, s1, 0" % (S_T0 + 2))
    a.e("s_load_dwordx2 s[%d:%d], s[%d:%d], 32" % (S_PTR, S_PTR + 1, S_T0 + 1, S_T0 + 2))
    a.e("s_load_dwordx2 s[%d:%d], s[0:1], 96" % (S_WSP, S_WSP + 1))
    a.e("s_load_dwordx4 s[%d:%d], s[0:1], 80" % (S_OD, S_OD + 3))
    a.e("v_lshrrev_b32 v%d, 6, v0" % V_TMP)
    a.e("v_and_b32 v0, 63, v0")
    a.e("v_readfirstlane_b32 s%d, v%d" % (S_WAVE, V_TMP))
    a.e("v_lshlrev_b32 v%d, 4, v0" % V_L16)
    a.e("v_lshrrev_b32 v%d, 4, v0" % V_X1)
    a.e("v_and_b32 v%d, 15, v0" % V_X2)
    a.e("s_and_b32 s%d, s%d, 3" % (S_WS, S_WAVE))
    a.e("s_lshr_b32 s%d, s%d, 2" % (S_GRP, S_WAVE))
    a.e("s_mov_b32 s%d, 0x74208630" % S_T3)
    a.e("s_lshl_b32 s%d, s%d, 2" % (S_T0, S_WAVE))
    a.e("s_lshr_b32 s%d, s%d, s%d" % (S_NT0, S_T3, S_T0))
    a.e("s_and_b32 s%d, s%d, 15" % (S_NT0, S_NT0))
    a.e("v_mul_u32_u24 v%d, 0xa00, v%d" % (V_X3, V_X1))
    a.e("v_bfe_u32 v%d, v0, 2, 2" % V_X4)
    a.e("v_lshl_add_u32 v%d, v%d, 6, v%d" % (V_X3, V_X4, V_X3))
    a.e("v_and_b32 v%d, 3, v0" % V_X4)
    a.e("v_lshl_add_u32 v%d, v%d, 3, v%d" % (V_X3, V_X4, V_X3))
    for tau in range(3):
        a.e("s_add_u32 s%d, s%d, %d" % (S_T3, S_NT0, tau))
        a.e("v_xor_b32 v%d, s%d, v%d" % (V_X4, S_T3, V_X1))
        a.e("v_and_b32 v%d, 1, v%d" % (V_X4, V_X4))
        a.e("v_lshl_add_u32 v%d, v%d, 5, v%d" % (V_AD + tau, V_X4, V_X3))
        a.e("s_lshr_b32 s%d, s%d, 1" % (S_T3, S_T3))
        a.e("s_lshl_b32 s%d, s%d, 8" % (S_T3, S_T3))
        a.e("s_add_u32 s%d, s%d, 0x%x" % (S_T3, S_T3, WOFFB))
        a.e("v_add_u32 v%d, s%d, v%d" % (V_AD + tau, S_T3, V_AD + tau))
    a.e("v_mov_b32 v%d, v%d" % (V_AD + 3, V_L16))
    for sl in (1, 2):
        for k in range(4):
            a.e("v_add_u32 v%d, 0x%x, v%d" % (V_AD + 4 * sl + k, sl * CHB, V_AD + k))
    for k in range(5):
        a.e("s_mul_i32 s%d, s%d, 20" % (S_T3, S_WS))
        a.e("s_add_u32 s%d, s%d, %d" % (S_T3, S_T3, 4 * k))
        a.e("v_add_u32 v%d, s%d, v%d" % (V_X2, S_T3, V_X1))
        a.e("v_mul_u32_u24 v%d, 0xcd, v%d" % (V_X3, V_X2))
        a.e("v_lshrrev_b32 v%d, 10, v%d" % (V_X3, V_X3))
        a.e("v_mul_u32_u24 v%d, 5, v%d" % (V_X4, V_X3))
        a.e("v_sub_u32 v%d, v%d, v%d" % (V_X2, V_X2, V_X4))
        a.e("v_and_b32 v%d, 2, v%d" % (V_X4, V_X3))
        a.e("v_xor_b32 v%d, v%d, v0" % (V_X4, V_X4))
        a.e("v_and_b32 v%d, 3, v%d" % (V_X4, V_X4))
        a.e("v_lshlrev_b32 v%d, 4, v%d" % (V_X4, V_X4))
        a.e("v_lshl_add_u32 v%d, v%d, 6, v%d" % (V_X2, V_X2, V_X4))
        a.e("v_bfe_u32 v%d, v0, 2, 2" % V_X4)
        a.e("v_lshl_add_u32 v%d, v%d, 2, v%d" % (V_X3, V_X3, V_X4))
        a.e("v_mul_u32_u24 v%d, 0x500, v%d" % (V_VW + k, V_X3))
        a.e("v_add_u32 v%d, v%d, v%d" % (V_VW + k, V_VW + k, V_X2))
    a.e("s_mul_i32 s%d, s%d, 5120" % (S_M0W, S_WS))
    a.e("s_mul_i32 s%d, s%d, 4608" % (S_M0O, S_WS))
    a.e("v_add_u32 v%d, s%d, v%d" % (V_VO, S_M0O, V_L16))
    for i in range(60):
        a.e("v_mov_b32 v%d, 0" % (V_ACC + i))
    a.e("s_waitcnt lgkmcnt(0)")
    a.e("s_lshl_b32 s%d, s%d, 3" % (S_T3, S_P))
    a.e("s_add_u32 s%d, s%d, s%d" % (S_T3, S_T3, S_B))
    a.e("s_lshl_b32 s%d, s%d, 2" % (S_T0, S_T3))
    a.e("s_add_u32 s%d, s%d, s%d" % (S_T1, S_T0, S_KS))
    a.e("s_mul_i32 s%d, s%d, %d" % (S_T1, S_T1, 8 * O_TASK))
    a.e("s_add_u32 s%d, s%d, s%d" % (S_O, S_WSP, S_T1))
    a.e("s_addc_u32 s%d, s%d, 0" % (S_O + 1, S_WSP + 1))
    a.e("s_mov_b32 s%d, %d" % (S_O + 2, 8 * O_TASK))
    a.e("s_mov_b32 s%d, 0x20000" % (S_O + 3))
    a.e("s_add_u32 s%d, s%d, s%d" % (S_TILE, S_T0, S_NB))
    a.e("s_mul_i32 s%d, s%d, %d" % (S_T0, S_TILE, 4 * SLAB))
    a.e("s_add_u32 s%d, s%d, 0x%x" % (S_T0, S_T0, PART))
    a.e("s_add_u32 s%d, s%d, s%d" % (S_PT, S_WSP, S_T0))
    a.e("s_addc_u32 s%d, s%d, 0" % (S_PT + 1, S_WSP + 1))
    a.e("s_mov_b32 s%d, %d" % (S_PT + 2, 4 * SLAB))
    a.e("s_mov_b32 s%d, 0x20000" % (S_PT + 3))
    for k in range(3):
        a.e("s_add_u32 s%d, s%d, %d" % (S_T0, S_KS, k + 1))
        a.e("s_and_b32 s%d, s%d, 3" % (S_T0, S_T0))
        a.e("s_mul_i32 s%d, s%d, %d" % (S_SRC + k, S_T0, SLAB))
    a.e("s_mul_i32 s%d, s%d, %d" % (S_T0, S_B, 144 * 2560))
    a.e("s_mul_i32 s%d, s%d, 1280" % (S_T1, S_P))
    a.e("s_add_u32 s%d, s%d, s%d" % (S_T0, S_T0, S_T1))
    a.e("s_mul_i32 s%d, s%d, 320" % (S_T1, S_NB))
    a.e("s_add_u32 s%d, s%d, s%d" % (S_T0, S_T0, S_T1))
    a.e("s_add_u32 s%d, s%d, s%d" % (S_OUT, S_OD, S_T0))
    a.e("s_addc_u32 s%d, s%d, 0" % (S_OUT + 1, S_OD + 1))
    a.e("s_sub_u32 s%d, 2949120, s%d" % (S_OUT + 2, S_T0))
    a.e("s_mov_b32 s%d, 0x20000" % (S_OUT + 3))
    a.e("s_add_u32 s%d, s%d, 0x%x" % (S_FL, S_WSP, FLAGS))
    a.e("s_addc_u32 s%d, s%d, 0" % (S_FL + 1, S_WSP + 1))
    a.e("s_mov_b32 s%d, 8192" % (S_FL + 2))
    a.e("s_mov_b32 s%d, 0x20000" % (S_FL + 3))
    a.e("s_mul_i32 s%d, s%d, 1966080" % (S_T0, S_KS))
    a.e("s_mul_i32 s%d, s%d, 320" % (S_T1, S_NB))
    a.e("s_add_u32 s%d, s%d, s%d" % (S_T0, S_T0, S_T1))
    a.e("s_add_u32 s%d, s%d, s%d" % (S_W, S_PTR, S_T0))
    a.e("s_addc_u32 s%d, s%d, 0" % (S_W + 1, S_PTR + 1))
    a.e("s_sub_u32 s%d, 1966080, s%d" % (S_W + 2, S_T1))
    a.e("s_mov_b32 s%d, 0x20000" % (S_W + 3))
    a.e("s_mul_i32 s%d, s%d, 18432" % (S_KO, S_CH))
    a.e("s_mul_i32 s%d, s%d, 81920" % (S_KW, S_CH))
    if dbg:
        a.e("s_lshl_b32 s%d, s2, 3" % S_T3)
        a.e("s_add_u32 s%d, s%d, s%d" % (S_T3, S_T3, S_WAVE))
        a.e("s_lshl_b32 s%d, s%d, 7" % (S_T3, S_T3))
        a.e("s_add_u32 s%d, s%d, 0x4800000" % (S_T3, S_T3))
        a.e("s_add_u32 s%d, s%d, s%d" % (S_DBG, S_WSP, S_T3))
        a.e("s_addc_u32 s%d, s%d, 0" % (S_DBG + 1, S_WSP + 1))
        a.e("s_mov_b32 s%d, 128" % (S_DBG + 2))
        a.e("s_mov_b32 s%d, 0x20000" % (S_DBG + 3))
        a.e("s_memrealtime s[%d:%d]" % (S_TM, S_TM + 1))
        a.e("s_waitcnt lgkmcnt(0)")
        a.e("v_mov_b32 v%d, s%d" % (V_TMP, S_TM))
        a.lines.append("    buffer_store_dword v%d, off, s[%d:%d], 0 offset:52" % (V_TMP, S_DBG, S_DBG + 3))
    stampb(a, 0, dbg)
    WNT = " nt" if opt.get("wont") else ""

    def dma_chunk(grp, slot, tag):
        L = []
        base = slot * CHB
        if grp == 1:
            for n in range(5):
                g = ["s_add_u32 m0, s%d, 0x%x" % (S_M0O, base + OOFF + 1024 * n),
                     "s_add_u32 s%d, s%d, 0x%x" % (S_T3, S_KO, n * 1024)]
                if n == 4:
                    g.append("s_mov_b32 exec_hi, 0")
                if not opt.get("bno"):
                    g.append(("buffer_load_dwordx4 v%d, s[%d:%d], s%d offen lds" % (V_VO, S_O, S_O + 3, S_T3), tag))
                if n == 4:
                    g.append("s_mov_b32 exec_hi, -1")
                L.append(g)
            L.append(["s_add_u32 s%d, s%d, 18432" % (S_KO, S_KO),
                      "s_cmp_ge_u32 s%d, %d" % (S_KO, 8 * O_TASK),
                      "s_cselect_b32 s%d, 0, s%d" % (S_KO, S_KO)])
        else:
            for k in range(5):
                L.append(["s_add_u32 m0, s%d, 0x%x" % (S_M0W, base + WOFFB + 1024 * k), "s_nop 0",
                          ("buffer_load_dwordx4 v%d, s[%d:%d], s%d offen%s lds" % (V_VW + k, S_W, S_W + 3, S_KW, WNT), tag)
                          if not opt.get("bnw") else "s_nop 0"])
            L.append(["s_add_u32 s%d, s%d, 81920" % (S_KW, S_KW),
                      "s_cmp_ge_u32 s%d, 1966080" % S_KW,
                      "s_cselect_b32 s%d, 0, s%d" % (S_KW, S_KW)])
        return L

    def reads(tiles, nn, slot, kh):
        fset = kh
        ad = V_AD + 4 * slot
        L = []
        for tau in range(nn):
            d = V_A + fset * 12 + tau * 4
            L.append(["ds_read_b64_tr_b16 %s, v%d offset:%d" % (vr(d, 2), ad + tau, kh * 10240)])
            L.append(["ds_read_b64_tr_b16 %s, v%d offset:%d" % (vr(d + 2, 2), ad + tau, kh * 10240 + 1280)])
        for j, t in enumerate(tiles):
            d = V_B + fset * 20 + j * 4
            L.append(["ds_read_b128 %s, v%d offset:%d" % (vr(d, 4), ad + 3, OOFF + kh * 9216 + t * 1024)])
        return L

    def mfmas(tiles, nn, fset):
        M = []
        for j, t in enumerate(tiles):
            for tau in range(nn):
                acc = V_ACC + (j * 3 + tau) * 4
                M.append("v_mfma_f32_16x16x32_bf16 %s, %s, %s, %s" % (
                    vr(acc, 4), vr(V_A + fset * 12 + tau * 4, 4), vr(V_B + fset * 20 + j * 4, 4), vr(acc, 4)))
        return M

    def spread(mf, oth, dm):
        nm = len(mf)
        span = max(1, nm * opt.get("bspan", 60) // 100)
        ri = di = 0
        d0 = opt.get("bd0", 1)
        for i, m in enumerate(mf):
            a.e(m)
            k = -(-(len(oth) - ri) // max(span - i, 1))
            for _ in range(k):
                a.g1(oth[ri])
                ri += 1
            if d0:
                if ri == len(oth) and di < len(dm) and i >= span:
                    k = -(-(len(dm) - di) // (nm - i))
                    for _ in range(k):
                        a.g1(dm[di])
                        di += 1
            elif di < len(dm) and (i + 1) * len(dm) >= (di + 1) * nm - nm // 2:
                a.g1(dm[di])
                di += 1
        while di < len(dm):
            a.g1(dm[di])
            di += 1

    a.e("s_lshr_b32 s%d, s%d, 1" % (S_T3, S_WAVE))
    for v in range(1, 4):
        a.e("s_cmp_eq_u32 s%d, %d" % (S_T3, v))
        a.e("s_cbranch_scc1 LB_v%d" % v)
    for v in range(4):
        grp = v >> 1
        nn = (3, 2, 2, 3)[v]
        tiles = [0, 1, 2, 3, 4] if grp == 0 else [5, 6, 7, 8]
        if v:
            a.label("LB_v%d" % v)
        bp = opt.get("bprio", 0)
        if (bp == 1 and grp == 1) or (bp == 2 and len(tiles) * nn <= 10):
            a.e("s_setprio 1")
        a.grp(dma_chunk(grp, 0, 0))
        a.grp(dma_chunk(grp, 1, 1))
        a.e("s_waitcnt vmcnt(5)")
        a.e("s_barrier")
        a.grp(reads(tiles, nn, 0, 0))
        a.grp(dma_chunk(grp, 2, 2)[:3])
        a.e("s_mov_b32 s%d, 0" % S_CNT)
        for last in (0, 1):
            lp = "LB_loop%d" % v
            if not last:
                a.label(lp)
            for c in range(3):
                a.e("s_waitcnt lgkmcnt(0)")
                dm = []
                if not (last and c > 0):
                    dm = dma_chunk(grp, (c + 2) % 3, None)[3:]
                spread(mfmas(tiles, nn, 0), reads(tiles, nn, c, 1), dm)
                if not last:
                    a.e("s_waitcnt vmcnt(5) lgkmcnt(0)")
                else:
                    a.e("s_waitcnt vmcnt(%d) lgkmcnt(0)" % (5 if c == 0 else 0))
                a.e("s_barrier")
                oth = []
                if not (last and c == 2):
                    oth = reads(tiles, nn, (c + 1) % 3, 0)
                dm = []
                if not last:
                    dm = dma_chunk(grp, c, None)[:3]
                spread(mfmas(tiles, nn, 1), oth, dm)
            if not last and opt.get("dbgb2"):
                a.e("s_memtime s[%d:%d]" % (S_TM, S_TM + 1))
                a.e("s_waitcnt lgkmcnt(0)")
                a.e("v_mov_b32 v%d, s%d" % (V_TMP, S_TM))
                a.e("s_lshl_b32 s%d, s%d, 2" % (S_T3, S_CNT))
                a.lines.append("    buffer_store_dword v%d, off, s[%d:%d], s%d offset:64" % (V_TMP, S_DBG, S_DBG + 3, S_T3))
            if not last:
                a.e("s_add_u32 s%d, s%d, 1" % (S_CNT, S_CNT))
                a.e("s_cmp_lt_u32 s%d, 7" % S_CNT)
                a.e("s_cbranch_scc1 %s" % lp)
        stampb(a, 1, dbg)
        a.e("s_nop 7")
        accs = [(j, t, tau) for j, t in enumerate(tiles) for tau in range(nn)]
        a.e("s_lshl_b32 s%d, s%d, 13" % (S_T0, S_WAVE))
        a.e("v_add_u32 v%d, s%d, v%d" % (V_X1, S_T0, V_L16))
        a.e("s_mul_i32 s%d, s%d, %d" % (S_T1, S_KS, SLAB))
        for r in range(4):
            l = a.newlabel("LB_ps")
            a.e("s_cmp_eq_u32 s%d, %d" % (S_KS, r))
            a.e("s_cbranch_scc1 %s" % l)
            a.e("s_add_u32 s%d, s%d, %d" % (S_T3, S_T1, r * 2048))
            mine = accs[r::4]
            for pr in range((len(mine) + 1) // 2):
                d = V_A + (r * 2 + pr) * 4
                for hh, (j, t, tau) in enumerate(mine[2 * pr:2 * pr + 2]):
                    acc = V_ACC + (j * 3 + tau) * 4
                    a.e("v_cvt_pk_bf16_f32 v%d, v%d, v%d" % (d + 2 * hh, acc, acc + 1))
                    a.e("v_cvt_pk_bf16_f32 v%d, v%d, v%d" % (d + 2 * hh + 1, acc + 2, acc + 3))
                a.e("buffer_store_dwordx4 %s, v%d, s[%d:%d], s%d offen offset:%d sc1" % (
                    vr(d, 4), V_X1, S_PT, S_PT + 3, S_T3, pr * 1024))
            a.label(l)
        a.e("v_and_b32 v%d, 15, v0" % V_X2)
        a.e("v_mul_u32_u24 v%d, 0xa00, v%d" % (V_X2, V_X2))
        a.e("v_lshrrev_b32 v%d, 4, v0" % V_X3)
        a.e("v_lshl_add_u32 v%d, v%d, 3, v%d" % (V_X2, V_X3, V_X2))
        a.e("s_lshl_b32 s%d, s%d, 5" % (S_T0, S_NT0))
        a.e("v_add_u32 v%d, s%d, v%d" % (V_X2, S_T0, V_X2))
        a.e("s_waitcnt vmcnt(0)")
        stampb(a, 3, dbg)
        a.e("s_barrier")
        stampb(a, 4, dbg)
        if v == 0:
            lw, lp2, ld = a.newlabel("LB_fw"), a.newlabel("LB_fp"), a.newlabel("LB_fd")
            a.e("s_cmp_eq_u32 s%d, 0" % S_WAVE)
            a.e("s_cbranch_scc0 %s" % lw)
            a.e("s_lshl_b32 s%d, s%d, 7" % (S_T0, S_TILE))
            a.e("v_mov_b32 v%d, 1" % V_X3)
            a.e("s_mov_b64 exec, 1")
            a.e("buffer_atomic_add v%d, off, s[%d:%d], s%d sc1" % (V_X3, S_FL, S_FL + 3, S_T0))
            a.e("s_mov_b32 s%d, 0" % S_CNT)
            a.label(lp2)
            a.e("buffer_load_dword v%d, off, s[%d:%d], s%d sc1" % (V_X4, S_FL, S_FL + 3, S_T0))
            a.e("s_waitcnt vmcnt(0)")
            a.e("v_readfirstlane_b32 s%d, v%d" % (S_T1, V_X4))
            a.e("s_add_u32 s%d, s%d, 1" % (S_CNT, S_CNT))
            a.e("s_cmp_ge_u32 s%d, 4" % S_T1)
            a.e("s_cbranch_scc1 %s" % ld)
            a.e("s_cmp_lt_u32 s%d, 0x100000" % S_CNT)
            a.e("s_cbranch_scc1 %s" % lp2)
            a.label(ld)
            a.e("s_mov_b64 exec, -1")
            a.label(lw)
        a.e("s_barrier")
        stampb(a, 5, dbg)
        for r in range(4):
            l = a.newlabel("LB_pr")
            a.e("s_cmp_eq_u32 s%d, %d" % (S_KS, r))
            a.e("s_cbranch_scc0 %s" % l)
            mine = accs[r::4]
            npr = (len(mine) + 1) // 2
            for pr in range(npr):
                for k in range(3):
                    a.e("s_add_u32 s%d, s%d, %d" % (S_T3, S_SRC + k, r * 2048))
                    a.e("buffer_load_dwordx4 %s, v%d, s[%d:%d], s%d offen offset:%d sc1" % (
                        vr(V_A + (pr * 3 + k) * 4, 4), V_X1, S_PT, S_PT + 3, S_T3, pr * 1024))
            nst = 0
            for i, (j, t, tau) in enumerate(mine):
                pr, hh = i >> 1, i & 1
                acc = V_ACC + (j * 3 + tau) * 4
                if hh == 0:
                    a.e("s_waitcnt vmcnt(%d)" % (3 * (npr - 1 - pr) + nst))
                for k in range(3):
                    for e in range(2):
                        src = V_A + (pr * 3 + k) * 4 + 2 * hh + e
                        a.e("v_lshlrev_b32 v%d, 16, v%d" % (V_X3, src))
                        a.e("v_and_b32 v%d, 0xffff0000, v%d" % (V_X4, src))
                        a.e("v_add_f32 v%d, v%d, v%d" % (acc + 2 * e, acc + 2 * e, V_X3))
                        a.e("v_add_f32 v%d, v%d, v%d" % (acc + 2 * e + 1, acc + 2 * e + 1, V_X4))
                a.e("v_cvt_pk_bf16_f32 v%d, v%d, v%d" % (acc, acc, acc + 1))
                a.e("v_cvt_pk_bf16_f32 v%d, v%d, v%d" % (acc + 1, acc + 2, acc + 3))
                a.e("s_mov_b32 s%d, %d" % (S_T3, t * 40960))
                a.e("buffer_store_dwordx2 %s, v%d, s[%d:%d], s%d offen offset:%d" % (
                    vr(acc, 2), V_X2, S_OUT, S_OUT + 3, S_T3, tau * 32))
                nst += 1
            a.label(l)
        stampb(a, 2, dbg)
        if dbg:
            a.e("s_waitcnt vmcnt(0)")
            a.e("s_memrealtime s[%d:%d]" % (S_TM, S_TM + 1))
            a.e("s_waitcnt lgkmcnt(0)")
            a.e("v_mov_b32 v%d, s%d" % (V_TMP, S_TM))
            a.lines.append("    buffer_store_dword v%d, off, s[%d:%d], 0 offset:48" % (V_TMP, S_DBG, S_DBG + 3))
        a.e("s_endpgm")
    a.label("LB_end")
    a.e("s_endpgm")


def gen_reduce(a, opt):
    kn = "reduce_kernel"
    a.lines.append(".globl %s\n.p2align 8\n.type %s,@function" % (kn, kn))
    a.label(kn)
    a.e("s_cmp_ge_u32 s2, 1440")
    a.e("s_cbranch_scc1 LC_end")
    a.e("s_load_dwordx2 s[4:5], s[0:1], 96")
    a.e("s_load_dwordx2 s[6:7], s[0:1], 80")
    a.e("v_lshrrev_b32 v1, 6, v0")
    a.e("v_and_b32 v0, 63, v0")
    a.e("v_readfirstlane_b32 s20, v1")
    a.e("s_lshl_b32 s21, s2, 2")
    a.e("s_add_u32 s21, s21, s20")
    a.e("s_mul_hi_u32 s22, s21, 0x2d82d83")
    a.e("s_mul_i32 s23, s22, 90")
    a.e("s_sub_u32 s23, s21, s23")
    a.e("s_mul_i32 s24, s22, %d" % (4 * 92160))
    a.e("s_lshl_b32 s25, s23, 10")
    a.e("s_add_u32 s24, s24, s25")
    a.e("s_add_u32 s24, s24, 0x%x" % PART)
    a.e("v_lshlrev_b32 v2, 4, v0")
    a.e("v_add_u32 v2, s24, v2")
    a.e("s_waitcnt lgkmcnt(0)")
    a.e("s_mov_b32 s8, s4")
    a.e("s_mov_b32 s9, s5")
    a.e("s_mov_b32 s10, 0x10000000")
    a.e("s_mov_b32 s11, 0x20000")
    a.e("s_mov_b32 s12, s6")
    a.e("s_mov_b32 s13, s7")
    a.e("s_mov_b32 s14, 2949120")
    a.e("s_mov_b32 s15, 0x20000")
    for k in range(4):
        a.e("s_mov_b32 s26, %d" % (k * 92160))
        a.e("buffer_load_dwordx4 v[%d:%d], v2, s[8:11], s26 offen" % (4 + 4 * k, 7 + 4 * k))
    a.e("s_mul_i32 s25, s23, 103")
    a.e("s_lshr_b32 s25, s25, 10")
    a.e("s_mul_i32 s26, s25, 10")
    a.e("s_sub_u32 s26, s23, s26")
    a.e("s_and_b32 s27, s22, 3")
    a.e("s_lshr_b32 s28, s22, 2")
    a.e("s_and_b32 s29, s28, 7")
    a.e("s_lshr_b32 s28, s28, 3")
    a.e("s_mul_i32 s29, s29, 144")
    a.e("s_lshl_b32 s25, s25, 4")
    a.e("s_add_u32 s29, s29, s25")
    a.e("s_mul_i32 s29, s29, 2560")
    a.e("s_mul_i32 s28, s28, 1280")
    a.e("s_mul_i32 s27, s27, 320")
    a.e("s_lshl_b32 s26, s26, 5")
    a.e("s_add_u32 s29, s29, s28")
    a.e("s_add_u32 s29, s29, s27")
    a.e("s_add_u32 s29, s29, s26")
    a.e("v_and_b32 v3, 15, v0")
    a.e("v_mul_u32_u24 v3, 0xa00, v3")
    a.e("v_lshrrev_b32 v1, 4, v0")
    a.e("v_lshl_add_u32 v3, v1, 3, v3")
    a.e("s_waitcnt vmcnt(0)")
    for r in range(4):
        a.e("v_add_f32 v%d, v%d, v%d" % (4 + r, 4 + r, 8 + r))
        a.e("v_add_f32 v%d, v%d, v%d" % (12 + r, 12 + r, 16 + r))
    for r in range(4):
        a.e("v_add_f32 v%d, v%d, v%d" % (4 + r, 4 + r, 12 + r))
    a.e("v_cvt_pk_bf16_f32 v4, v4, v5")
    a.e("v_cvt_pk_bf16_f32 v5, v6, v7")
    a.e("buffer_store_dwordx2 v[4:5], v3, s[12:15], s29 offen")
    a.label("LC_end")
    a.e("s_endpgm")
```

```python
import sys, math, struct

NAME = "concat_heads__mha_block_cached__mha_block_cached__near_ridge"


class Asm:
    def __init__(self):
        self.lines = []
        self.uid = 0
        self.vm = []

    def e(self, s, tag=None):
        self.lines.append("    " + s)
        if s.startswith("buffer_") or s.startswith("global_"):
            self.vm.append(tag)

    def grp(self, groups):
        for g in groups:
            self.g1(g)

    def g1(self, g):
        for ins in g:
            if isinstance(ins, tuple):
                self.e(ins[0], ins[1])
            else:
                self.e(ins)

    def vmn(self, tag):
        idx = [i for i, t in enumerate(self.vm) if t == tag]
        assert idx, tag
        n = len(self.vm) - 1 - idx[-1]
        assert n <= 63, n
        return n

    def c(self, s):
        self.lines.append("    ; " + s)

    def label(self, l):
        self.lines.append(l + ":")

    def newlabel(self, p="L"):
        self.uid += 1
        return "%s_%d" % (p, self.uid)

    def text(self):
        return "\n".join(self.lines) + "\n"


def vr(b, n=1):
    return "v%d" % b if n == 1 else "v[%d:%d]" % (b, b + n - 1)


def f32(x):
    return struct.unpack("<I", struct.pack("<f", x))[0]


def interleave(a, mfmas, others, lead=1, span=None):
    n = len(mfmas) if span is None else min(span, len(mfmas))
    m = len(others)
    oi = 0
    for i, mf in enumerate(mfmas):
        a.e(mf)
        if i + 1 >= lead and oi < m:
            rem = max(n - i, 1)
            k = -(-(m - oi) // rem)
            for _ in range(k):
                a.g1(others[oi])
                oi += 1
    while oi < m:
        a.g1(others[oi])
        oi += 1


CH = 43008
XLOC = (0, 67584, 86016)
WLOC = (18432, 43008, 104448)
NCH = 3
KST = 98304
KR = 4
S_PA, S_PB, S_TA, S_TB = 0, 1, 2, 3
VBASE = 73728
VSLOT = 12288
NV = 7
PSLOT = 9216
REDB = 159744
LDS_A = 163840
O_TASK = 55296
MAXB = 55296
SUMB = 159744 - 512

S_X, S_W, S_K, S_V, S_O = 4, 8, 12, 16, 20
S_WAVE, S_WS, S_GRP = 24, 25, 26
S_T0, S_T1, S_T2, S_T3 = 27, 28, 29, 30
S_KX, S_KW = 31, 32
S_M0X, S_M0W = 33, 34
S_TYPE = 35
S_C = 36
S_M0K = 37
S_VR, S_PR = 38, 39
S_CH = 43
S_PTR = 44
S_WSP = 52
S_P, S_B, S_H = 54, 55, 56
S_TQ = 57
S_HI, S_TASK = 58, 59
S_QW = 40
S_DE, S_DC = 96, 99
S_WO = 48
S_XN = 44
S_DBG = 60
S_TM = 64

V_LANE, V_L16, V_VOFFV, V_TMP = 0, 1, 2, 3
V_QF = 4
V_S = 16
V_K = 160
V_ACC1, V_A1, V_B1 = 16, 76, 100
V_TRA, V_TRB, V_XA, V_XB = 140, 143, 146, 148
V_VX0, V_VX1, V_VW = 152, 153, 154
V_QW = 155
V_X1, V_X2, V_X3, V_X4 = 4, 5, 6, 7
V_VK0, V_VK1, V_KR0, V_KR1 = 12, 13, 14, 15
V_MC = 160
V_SUM = 169
V_RT = 180
V_ACC3 = 180
V_A3 = (240, 72)
V_B3 = (16, 52)
V_ET = 36
V_TVL, V_TVH = 4, 84
V_PB0, V_PB1 = 1, 8
V_PW = 9
V_Y, V_YW = 10, 11
V_QW3 = 12


def S(kt, t):
    return V_S + (kt * 9 + t) * 4


def Kf(kt, s):
    return V_K + (kt * 6 + s) * 4


CLK = "s_memtime"


def stamp(a, idx, dbg):
    if not dbg:
        return
    a.e("%s s[%d:%d]" % (CLK, S_TM, S_TM + 1))
    a.e("s_waitcnt lgkmcnt(0)")
    a.e("v_mov_b32 v%d, s%d" % (dbg, S_TM))
    a.lines.append("    buffer_store_dword v%d, off, s[%d:%d], 0 offset:%d" % (dbg, S_DBG, S_DBG + 3, idx * 4))


def xlane_reduce(a, regs, tmps, op):
    for sw in ("v_permlane32_swap_b32", "v_permlane16_swap_b32"):
        for r, t in zip(regs, tmps):
            a.e("v_mov_b32 v%d, v%d" % (t, r))
        a.e("s_nop 1")
        for r, t in zip(regs, tmps):
            a.e("%s v%d, v%d" % (sw, r, t))
        a.e("s_nop 1")
        for r, t in zip(regs, tmps):
            a.e("%s v%d, v%d, v%d" % (op, r, r, t))


def gen_attn(a, opt):
    dbg = opt.get("dbg", False)
    global CLK
    if opt.get("rt"):
        CLK = "s_memrealtime"
    kn = "attn_kernel"
    x0, x1 = V_XA, V_XA + 1

    def tr_addr(dst, base, t1, t2):
        a.e("v_lshrrev_b32 v%d, 4, v0" % t1)
        a.e("v_bfe_u32 v%d, v0, 2, 2" % t2)
        a.e("v_lshl_add_u32 v%d, v%d, 3, v%d" % (t1, t1, t2))
        a.e("v_and_b32 v%d, 3, v0" % t2)
        a.e("v_lshlrev_b32 v%d, 3, v%d" % (t2, t2))
        a.e("v_lshl_add_u32 v%d, v%d, 7, v%d" % (t1, t1, t2))
        a.e("v_bfe_u32 v%d, v0, 3, 2" % t2)
        for tau in range(3):
            a.e("v_xor_b32 v%d, s%d, v%d" % (dst + tau, S_DE + tau, t2))
            a.e("v_lshl_add_u32 v%d, v%d, 5, v%d" % (dst + tau, dst + tau, t1))
            a.e("s_add_u32 s%d, s%d, 0x%x" % (S_T3, S_DC + tau, base))
            a.e("v_add_u32 v%d, s%d, v%d" % (dst + tau, S_T3, dst + tau))

    def addr_dma():
        a.e("v_lshrrev_b32 v%d, 4, v0" % V_X1)
        a.e("v_lshrrev_b32 v%d, 3, v0" % V_X2)
        a.e("s_lshl_b32 s%d, s%d, 3" % (S_T3, S_WS))
        a.e("v_add_u32 v%d, s%d, v%d" % (V_X2, S_T3, V_X2))
        a.e("v_bfe_u32 v%d, v0, 1, 2" % V_X3)
        a.e("v_and_b32 v%d, 1, v%d" % (V_X4, V_X1))
        a.e("v_xor_b32 v%d, v%d, v%d" % (V_X3, V_X3, V_X4))
        a.e("s_and_b32 s%d, s%d, 1" % (S_T3, S_WS))
        a.e("s_lshl_b32 s%d, s%d, 1" % (S_T3, S_T3))
        a.e("v_xor_b32 v%d, s%d, v%d" % (V_X3, S_T3, V_X3))
        a.e("v_and_b32 v%d, 1, v0" % V_X4)
        a.e("v_lshlrev_b32 v%d, 4, v%d" % (V_X4, V_X4))
        a.e("v_lshl_add_u32 v%d, v%d, 5, v%d" % (V_X3, V_X3, V_X4))
        a.e("v_mul_u32_u24 v%d, 0x3000, v%d" % (V_VW, V_X2))
        a.e("v_add_u32 v%d, v%d, v%d" % (V_VW, V_VW, V_X3))
        a.e("v_mul_u32_u24 v%d, 0x180, v%d" % (V_VOFFV, V_X2))
        a.e("v_add_u32 v%d, v%d, v%d" % (V_VOFFV, V_VOFFV, V_X3))
        a.e("s_mul_i32 s%d, s%d, 36" % (S_T3, S_WS))
        a.e("v_lshrrev_b32 v%d, 3, v0" % V_X2)
        a.e("v_add_u32 v%d, s%d, v%d" % (V_X2, S_T3, V_X2))
        a.e("v_bfe_u32 v%d, v%d, 1, 3" % (V_X3, V_X2))
        a.e("v_and_b32 v%d, 7, v0" % V_X4)
        a.e("v_xor_b32 v%d, v%d, v%d" % (V_X3, V_X3, V_X4))
        a.e("v_lshlrev_b32 v%d, 4, v%d" % (V_X3, V_X3))
        a.e("v_mul_u32_u24 v%d, 0x500, v%d" % (V_X2, V_X2))
        a.e("v_add_u32 v%d, v%d, v%d" % (V_VX0, V_X2, V_X3))
        a.e("v_xor_b32 v%d, 64, v%d" % (V_X3, V_X3))
        a.e("v_add_u32 v%d, v%d, v%d" % (V_VX1, V_X2, V_X3))

    def qw_addr(dst):
        a.e("v_and_b32 v%d, 15, v0" % (dst + 2))
        a.e("v_lshlrev_b32 v%d, 4, v%d" % (dst + 2, dst + 2))
        a.e("v_lshrrev_b32 v%d, 5, v0" % dst)
        a.e("v_lshl_add_u32 v%d, v%d, 8, v%d" % (dst + 2, dst, dst + 2))
        a.e("v_bfe_u32 v%d, v0, 4, 1" % dst)
        a.e("v_lshl_add_u32 v%d, v%d, 3, v%d" % (dst + 2, dst, dst + 2))
        for tau in range(3):
            a.e("v_add_u32 v%d, s%d, v%d" % (dst + tau, S_QW + tau, dst + 2))

    def addr_rest():
        a.e("v_lshrrev_b32 v%d, 4, v0" % V_X1)
        a.e("v_and_b32 v%d, 15, v0" % V_X2)
        tr_addr(V_TRA, WLOC[0], V_X3, V_X4)
        for tau in range(3):
            a.e("v_add_u32 v%d, 0x%x, v%d" % (V_TRB + tau, WLOC[2] - WLOC[0], V_TRA + tau))
        a.e("v_lshrrev_b32 v%d, 1, v%d" % (V_X3, V_X2))
        a.e("v_xor_b32 v%d, v%d, v%d" % (V_X3, V_X3, V_X1))
        a.e("v_lshlrev_b32 v%d, 4, v%d" % (V_X3, V_X3))
        a.e("v_lshl_add_u32 v%d, v%d, 7, v%d" % (x0, V_X2, V_X3))
        a.e("v_xor_b32 v%d, 64, v%d" % (x1, x0))
        for k in range(2):
            a.e("v_add_u32 v%d, 0x%x, v%d" % (V_XB + k, XLOC[1], V_XA + k))
        a.e("v_add_u32 v%d, s%d, v%d" % (V_KR0, S_M0K, x0))
        a.e("v_add_u32 v%d, s%d, v%d" % (V_KR1, S_M0K, x1))
        a.e("v_bfe_u32 v%d, v0, 5, 1" % V_X2)
        a.e("v_bfe_u32 v%d, v0, 3, 2" % V_X3)
        a.e("v_lshl_add_u32 v%d, v%d, 3, v%d" % (V_X2, V_X2, V_X3))
        a.e("v_mul_u32_u24 v%d, 0x180, v%d" % (V_X2, V_X2))
        a.e("s_mul_i32 s%d, s%d, 24576" % (S_T3, S_WAVE))
        a.e("v_add_u32 v%d, s%d, v%d" % (V_X2, S_T3, V_X2))
        a.e("v_and_b32 v%d, 7, v0" % V_X4)
        a.e("v_xor_b32 v%d, v%d, v%d" % (V_X3, V_X4, V_X1))
        a.e("v_lshlrev_b32 v%d, 4, v%d" % (V_X3, V_X3))
        a.e("v_add_u32 v%d, v%d, v%d" % (V_VK0, V_X2, V_X3))
        a.e("v_xor_b32 v%d, 64, v%d" % (V_X3, V_X3))
        a.e("v_add_u32 v%d, v%d, v%d" % (V_VK1, V_X2, V_X3))
        a.e("v_add_u32 v%d, 0x%x, v%d" % (V_VK1, 16 * 384, V_VK1))
        qw_addr(V_QW)

    a.lines.append(".globl %s\n.p2align 8\n.type %s,@function" % (kn, kn))
    a.label(kn)
    a.e("s_cmp_ge_u32 s2, 256")
    a.e("s_cbranch_scc1 LA_end")
    a.e("s_and_b32 s%d, s2, 7" % S_T0)
    a.e("s_lshr_b32 s%d, s%d, 2" % (S_P, S_T0))
    a.e("s_mul_i32 s%d, s%d, 40" % (S_T2, S_P))
    a.e("s_add_u32 s%d, s0, s%d" % (S_T0 + 1, S_T2))
    a.e("s_addc_u32 s%d, s1, 0" % (S_T0 + 2))
    a.e("s_load_dwordx8 s[%d:%d], s[%d:%d], 0" % (S_PTR, S_PTR + 7, S_T0 + 1, S_T0 + 2))
    a.e("s_load_dwordx2 s[%d:%d], s[0:1], 96" % (S_WSP, S_WSP + 1))
    a.e("s_load_dwordx2 s[%d:%d], s[%d:%d], 32" % (S_TM, S_TM + 1, S_T0 + 1, S_T0 + 2))
    a.e("s_lshr_b32 s%d, s2, 3" % S_T3)
    a.e("s_and_b32 s%d, s%d, 3" % (S_H, S_T0))
    a.e("s_lshl_b32 s%d, s%d, 3" % (S_H, S_H))
    a.e("s_and_b32 s%d, s%d, 7" % (S_HI, S_T3))
    a.e("s_add_u32 s%d, s%d, s%d" % (S_H, S_H, S_HI))
    a.e("s_lshr_b32 s%d, s%d, 3" % (S_B, S_T3))
    a.e("s_xor_b32 s%d, s%d, s%d" % (S_TYPE, S_HI, S_B))
    a.e("s_and_b32 s%d, s%d, 1" % (S_TYPE, S_TYPE))
    if "type" in opt:
        a.e("s_mov_b32 s%d, %d" % (S_TYPE, opt["type"]))
    a.e("s_lshr_b32 s%d, s%d, 1" % (S_CH, S_HI))
    a.e("s_mul_i32 s%d, s%d, 5" % (S_CH, S_CH))
    a.e("s_lshr_b32 s%d, s%d, 1" % (S_CH, S_CH))
    a.e("s_bfe_u32 s%d, s%d, 0x10001" % (S_T3, S_B))
    a.e("s_mul_i32 s%d, s%d, 5" % (S_T3, S_T3))
    a.e("s_add_u32 s%d, s%d, s%d" % (S_CH, S_CH, S_T3))
    a.e("s_sub_u32 s%d, s%d, 10" % (S_T3, S_CH))
    a.e("s_cmp_ge_u32 s%d, 10" % S_CH)
    a.e("s_cselect_b32 s%d, s%d, s%d" % (S_CH, S_T3, S_CH))
    if opt.get("norot"):
        a.e("s_mov_b32 s%d, 0" % S_CH)
    a.e("s_mov_b32 s%d, 0" % S_TASK)
    a.e("v_lshrrev_b32 v%d, 6, v0" % V_TMP)
    a.e("v_and_b32 v0, 63, v0")
    a.e("v_readfirstlane_b32 s%d, v%d" % (S_WAVE, V_TMP))
    a.e("v_lshlrev_b32 v%d, 4, v0" % V_L16)
    a.e("s_mov_b32 s%d, 0x%08x" % (S_C, f32((192 ** -0.5) * math.log2(math.e))))
    a.e("s_and_b32 s%d, s%d, 3" % (S_WS, S_WAVE))
    a.e("s_lshr_b32 s%d, s%d, 2" % (S_GRP, S_WAVE))
    a.e("s_lshl_b32 s%d, s%d, 13" % (S_M0K, S_WAVE))
    a.e("s_add_u32 s%d, s%d, 0x%x" % (S_M0K, S_M0K, KST))
    a.e("s_lshl_b32 s%d, s%d, 10" % (S_M0W, S_WS))
    a.e("s_mul_i32 s%d, s%d, 4608" % (S_M0X, S_WS))
    for tau in range(3):
        a.e("s_mul_i32 s%d, s%d, 3" % (S_T3, S_WS))
        a.e("s_add_u32 s%d, s%d, %d" % (S_T3, S_T3, tau))
        a.e("s_and_b32 s%d, s%d, 3" % (S_DE + tau, S_T3))
        a.e("s_lshr_b32 s%d, s%d, 2" % (S_DC + tau, S_T3))
        a.e("s_lshl_b32 s%d, s%d, 12" % (S_DC + tau, S_DC + tau))
        a.e("s_lshr_b32 s%d, s%d, 1" % (S_TQ, S_T3))
        a.e("s_mul_i32 s%d, s%d, 9216" % (S_TQ, S_TQ))
        a.e("s_and_b32 s%d, s%d, 1" % (S_T3, S_T3))
        a.e("s_lshl_b32 s%d, s%d, 9" % (S_T3, S_T3))
        a.e("s_add_u32 s%d, s%d, s%d" % (S_QW + tau, S_T3, S_TQ))
    TW, TX = 16, 17
    a.e("s_mul_i32 s%d, s%d, 60" % (S_T3, S_WAVE))
    a.e("v_min_u32 v%d, 59, v0" % V_X1)
    a.e("v_add_u32 v%d, s%d, v%d" % (V_X1, S_T3, V_X1))
    a.e("v_mul_u32_u24 v%d, 0x2ab, v%d" % (V_X2, V_X1))
    a.e("v_lshrrev_b32 v%d, 11, v%d" % (V_X2, V_X2))
    a.e("v_mul_u32_u24 v%d, 3, v%d" % (V_X3, V_X2))
    a.e("v_sub_u32 v%d, v%d, v%d" % (V_X1, V_X1, V_X3))
    a.e("s_mul_i32 s%d, s%d, 160" % (S_T3, S_B))
    a.e("v_add_u32 v%d, s%d, v%d" % (V_X2, S_T3, V_X2))
    a.e("v_mul_u32_u24 v%d, 0x3000, v%d" % (TW, V_X2))
    a.e("v_lshl_add_u32 v%d, v%d, 7, v%d" % (TW, V_X1, TW))
    a.e("s_mul_i32 s%d, s%d, 180" % (S_T3, S_HI))
    a.e("s_mul_i32 s%d, s%d, 23" % (S_TQ, S_WAVE))
    a.e("s_add_u32 s%d, s%d, s%d" % (S_T3, S_T3, S_TQ))
    a.e("v_min_u32 v%d, 22, v0" % V_X1)
    a.e("v_add_u32 v%d, s%d, v%d" % (V_X1, S_T3, V_X1))
    a.e("v_lshlrev_b32 v%d, 7, v%d" % (TX, V_X1))
    addr_dma()
    a.e("s_waitcnt lgkmcnt(0)")
    px, pk, pv, pw = S_PTR, S_PTR + 2, S_PTR + 4, S_PTR + 6
    a.e("s_mul_i32 s%d, s%d, 184320" % (S_T3, S_B))
    a.e("s_add_u32 s%d, s%d, s%d" % (S_X, px, S_T3))
    a.e("s_addc_u32 s%d, s%d, 0" % (S_X + 1, px + 1))
    a.e("s_mov_b32 s%d, 184320" % (S_X + 2))
    a.e("s_mov_b32 s%d, 0x20000" % (S_X + 3))
    a.e("s_mul_i32 s%d, s%d, 384" % (S_T3, S_H))
    a.e("s_add_u32 s%d, s%d, s%d" % (S_W, pw, S_T3))
    a.e("s_addc_u32 s%d, s%d, 0" % (S_W + 1, pw + 1))
    a.e("s_sub_u32 s%d, 7864320, s%d" % (S_W + 2, S_T3))
    a.e("s_mov_b32 s%d, 0x20000" % (S_W + 3))
    if opt.get("touch", 1):
        a.e("buffer_load_dword v%d, v%d, s[%d:%d], 0 offen%s" % (TW, TW, S_W, S_W + 3, " nt" if opt.get("twnt") else ""))
        a.e("buffer_load_dword v%d, v%d, s[%d:%d], 0 offen%s" % (TX, TX, S_X, S_X + 3, " nt" if opt.get("txnt") else ""))
    a.e("s_lshl_b32 s%d, s%d, 5" % (S_T3, S_B))
    a.e("s_add_u32 s%d, s%d, s%d" % (S_T3, S_T3, S_H))
    a.e("s_lshl_b32 s%d, s%d, 8" % (S_TQ, S_P))
    a.e("s_add_u32 s%d, s%d, s%d" % (S_TQ, S_TQ, S_T3))
    a.e("s_mul_i32 s%d, s%d, %d" % (S_TQ, S_TQ, O_TASK))
    a.e("s_add_u32 s%d, s%d, s%d" % (S_O, S_WSP, S_TQ))
    a.e("s_addc_u32 s%d, s%d, 0" % (S_O + 1, S_WSP + 1))
    a.e("s_mov_b32 s%d, %d" % (S_O + 2, O_TASK))
    a.e("s_mov_b32 s%d, 0x20000" % (S_O + 3))
    a.e("s_mul_i32 s%d, s%d, 196608" % (S_T3, S_T3))
    for srd, p in ((S_K, pk), (S_V, pv)):
        a.e("s_add_u32 s%d, s%d, s%d" % (srd, p, S_T3))
        a.e("s_addc_u32 s%d, s%d, 0" % (srd + 1, p + 1))
        a.e("s_mov_b32 s%d, 196608" % (srd + 2))
        a.e("s_mov_b32 s%d, 0x20000" % (srd + 3))
    a.e("s_add_u32 s%d, s%d, %d" % (S_XN, S_X, 4 * 184320))
    a.e("s_addc_u32 s%d, s%d, 0" % (S_XN + 1, S_X + 1))
    a.e("s_mov_b32 s%d, 184320" % (S_XN + 2))
    a.e("s_mov_b32 s%d, 0x20000" % (S_XN + 3))
    lz = a.newlabel("LA_z")
    a.e("s_cmp_lt_u32 s2, 64")
    a.e("s_cbranch_scc0 %s" % lz)
    a.e("s_cmp_eq_u32 s%d, 0" % S_WAVE)
    a.e("s_cbranch_scc0 %s" % lz)
    a.e("s_add_u32 s%d, s%d, 0x3f00000" % (S_WO, S_WSP))
    a.e("s_addc_u32 s%d, s%d, 0" % (S_WO + 1, S_WSP + 1))
    a.e("s_mov_b32 s%d, 8192" % (S_WO + 2))
    a.e("s_mov_b32 s%d, 0x20000" % (S_WO + 3))
    a.e("s_lshl_b32 s%d, s2, 7" % S_T3)
    a.e("v_mov_b32 v%d, 0" % V_TMP)
    a.e("buffer_store_dword v%d, off, s[%d:%d], s%d" % (V_TMP, S_WO, S_WO + 3, S_T3))
    a.label(lz)
    a.e("s_lshr_b32 s%d, s%d, 3" % (S_T3, S_H))
    a.e("s_lshl_b32 s%d, s%d, 5" % (S_T3, S_T3))
    a.e("s_lshr_b32 s%d, s2, 3" % S_TQ)
    a.e("s_add_u32 s%d, s%d, s%d" % (S_T3, S_T3, S_TQ))
    a.e("s_mul_i32 s%d, s%d, 61440" % (S_T3, S_T3))
    a.e("s_add_u32 s%d, s%d, s%d" % (S_WO, S_TM, S_T3))
    a.e("s_addc_u32 s%d, s%d, 0" % (S_WO + 1, S_TM + 1))
    a.e("s_mov_b32 s%d, 61440" % (S_WO + 2))
    a.e("s_mov_b32 s%d, 0x20000" % (S_WO + 3))
    a.e("s_lshl_b32 s%d, s%d, 7" % (S_KX, S_CH))
    a.e("s_mul_i32 s%d, s%d, 0xc0000" % (S_KW, S_CH))
    if dbg:
        a.e("s_lshl_b32 s%d, s2, 3" % S_T3)
        a.e("s_add_u32 s%d, s%d, s%d" % (S_T3, S_T3, S_WAVE))
        a.e("s_lshl_b32 s%d, s%d, 7" % (S_T3, S_T3))
        a.e("s_add_u32 s%d, s%d, 0x4000000" % (S_T3, S_T3))
        a.e("s_add_u32 s%d, s%d, s%d" % (S_DBG, S_WSP, S_T3))
        a.e("s_addc_u32 s%d, s%d, 0" % (S_DBG + 1, S_WSP + 1))
        a.e("s_mov_b32 s%d, 128" % (S_DBG + 2))
        a.e("s_mov_b32 s%d, 0x20000" % (S_DBG + 3))
    for k, (sp, st) in enumerate(((S_PA, S_TA), (S_PB, S_TB))):
        a.e("s_lshl_b32 s%d, s%d, 1" % (S_T3, S_WAVE))
        a.e("s_add_u32 s%d, s%d, %d" % (S_T3, S_T3, k))
        a.e("s_mul_i32 s%d, s%d, 43" % (S_TQ, S_T3))
        a.e("s_lshr_b32 s%d, s%d, 7" % (S_TQ, S_TQ))
        a.e("s_mul_i32 s%d, s%d, 3" % (S_T2, S_TQ))
        a.e("s_sub_u32 s%d, s%d, s%d" % (S_T2, S_T3, S_T2))
        a.e("s_lshl_b32 s%d, s%d, 7" % (S_T2, S_T2))
        a.e("s_add_u32 s%d, s%d, 2" % (st, S_TQ))
        a.e("s_add_u32 s%d, s%d, 6" % (S_TQ, S_TQ))
        a.e("s_and_b32 s%d, s%d, 7" % (S_TQ, S_TQ))
        a.e("s_mul_i32 s%d, s%d, 24576" % (S_TQ, S_TQ))
        a.e("s_add_u32 s%d, s%d, s%d" % (sp, S_TQ, S_T2))
        a.e("s_cmp_ge_u32 s%d, 15" % S_T3)
        a.e("s_cselect_b32 s%d, 0x100000, s%d" % (sp, sp))
    addr_rest()
    dbgv = V_TMP if dbg else None
    NT = " nt" if opt.get("nt", True) else ""

    pairs = [(2 * ub + k, cg) for ub in range(2) for cg in range(3) for k in range(2)]

    def k_issue(p):
        kt, cg = pairs[p]
        ub, half = kt >> 1, kt & 1
        a.e("s_mov_b32 s%d, 0x%x" % (S_T3, ub * 12288 + half * 1536 + cg * 128))
        for hh in range(2):
            a.e("s_add_u32 m0, s%d, 0x%x" % (S_M0K, (p % KR) * 2048 + hh * 1024))
            a.e("s_nop 0")
            if not opt.get("nok"):
                a.e("buffer_load_dwordx4 v%d, s[%d:%d], s%d offen%s lds" % (
                    (V_VK0, V_VK1)[hh], S_K, S_K + 3, S_T3, NT), ("k", p))

    def k_take(p):
        kt, cg = pairs[p]
        if not opt.get("nok"):
            a.e("s_waitcnt vmcnt(%d)" % a.vmn(("k", p)))
        a.e("ds_read_b128 %s, v%d offset:%d" % (vr(Kf(kt, 2 * cg), 4), V_KR0, (p % KR) * 2048))
        a.e("ds_read_b128 %s, v%d offset:%d" % (vr(Kf(kt, 2 * cg + 1), 4), V_KR1, (p % KR) * 2048))
        a.e("s_waitcnt lgkmcnt(0)")
        if p + KR < 12:
            k_issue(p + KR)

    def dma_chunk(grp, slot, tag):
        L = []
        if grp == 1:
            for n in range(5):
                g = ["s_add_u32 m0, s%d, 0x%x" % (S_M0X, XLOC[slot] + 1024 * n),
                     "s_add_u32 s%d, s%d, 0x%x" % (S_T3, S_KX, n * 10240)]
                if n == 4:
                    g.append("s_mov_b32 exec_hi, 0")
                if not opt.get("nox"):
                    g.append(("buffer_load_dwordx4 v%d, s[%d:%d], s%d offen lds" % (
                        (V_VX0, V_VX1)[n & 1], S_X, S_X + 3, S_T3), tag))
                if n == 4:
                    g.append("s_mov_b32 exec_hi, -1")
                L.append(g)
            L.append(["s_add_u32 s%d, s%d, 128" % (S_KX, S_KX),
                      "s_cmp_ge_u32 s%d, 1280" % S_KX,
                      "s_cselect_b32 s%d, 0, s%d" % (S_KX, S_KX)])
        else:
            for kh in range(2):
                for cg in range(3):
                    g = ["s_add_u32 m0, s%d, 0x%x" % (S_M0W, WLOC[slot] + kh * 12288 + 4096 * cg - 128 * cg),
                         "s_nop 0"]
                    if not opt.get("now"):
                        g.append(("buffer_load_dwordx4 v%d, s[%d:%d], s%d offen offset:%d lds" % (
                            V_VW, S_W, S_W + 3, S_KW, 128 * cg), tag))
                    L.append(g)
                L.append(["s_add_u32 s%d, s%d, 0x60000" % (S_KW, S_KW)])
            L.append(["s_cmp_ge_u32 s%d, 0x780000" % S_KW,
                      "s_cselect_b32 s%d, 0, s%d" % (S_KW, S_KW)])
        return L

    border = [4, 5, 6, 7, 0, 1, 2, 3]

    def vgoff(tile):
        return border[tile & 7] * 24576 + (tile >> 3) * 12288

    def v_dma_const(tile, slot):
        goff = vgoff(tile)
        L = []
        if opt.get("nov"):
            return L
        for cg in range(3):
            L.append(["s_add_u32 m0, s%d, 0x%x" % (S_M0W, VBASE + slot * VSLOT + 4096 * cg - 128 * cg),
                      "s_mov_b32 s%d, 0x%x" % (S_T3, goff),
                      ("buffer_load_dwordx4 v%d, s[%d:%d], s%d offen offset:%d%s lds" % (
                          V_VOFFV, S_V, S_V + 3, S_T3, 128 * cg, NT), ("v", tile))])
        return L

    def p1_reads(tiles, step):
        c, kh = step >> 1, step & 1
        fset = step & 1
        sl = c % NCH
        tb, to = (V_TRA, WLOC[sl] - WLOC[0]) if sl < 2 else (V_TRB, 0)
        xb, xo = (V_XA, 0) if sl == 0 else (V_XB, XLOC[sl] - XLOC[1])
        L = []
        for tau in range(3):
            d = V_A1 + fset * 12 + tau * 4
            L.append(["ds_read_b64_tr_b16 %s, v%d offset:%d" % (vr(d, 2), tb + tau, to + kh * 12288)])
            L.append(["ds_read_b64_tr_b16 %s, v%d offset:%d" % (vr(d + 2, 2), tb + tau, to + kh * 12288 + 512)])
        for j, t in enumerate(tiles):
            d = V_B1 + fset * 20 + j * 4
            L.append(["ds_read_b128 %s, v%d offset:%d" % (vr(d, 4), xb + kh, xo + t * 2048)])
        return L

    def p1_mfmas(tiles, fset, first=False):
        M = []
        for j, t in enumerate(tiles):
            for tau in range(3):
                acc = V_ACC1 + (j * 3 + tau) * 4
                M.append("v_mfma_f32_16x16x32_bf16 %s, %s, %s, %s" % (
                    vr(acc, 4), vr(V_A1 + fset * 12 + tau * 4, 4), vr(V_B1 + fset * 20 + j * 4, 4),
                    "0" if first else vr(acc, 4)))
        return M

    def vmwait(tag, extra=""):
        if tag in a.vm:
            a.e("s_waitcnt vmcnt(%d)%s" % (a.vmn(tag), extra))
        elif extra:
            a.e("s_waitcnt" + extra)

    stamp(a, 0, dbgv)
    if dbg:
        a.e("s_getreg_b32 s%d, hwreg(HW_REG_XCC_ID)" % S_T3)
        a.e("v_mov_b32 v%d, s%d" % (V_TMP, S_T3))
        a.lines.append("    buffer_store_dword v%d, off, s[%d:%d], 0 offset:60" % (V_TMP, S_DBG, S_DBG + 3))
        a.e("s_getreg_b32 s%d, hwreg(HW_REG_HW_ID)" % S_T3)
        a.e("s_nop 1")
        a.e("v_mov_b32 v%d, s%d" % (V_TMP, S_T3))
        a.lines.append("    buffer_store_dword v%d, off, s[%d:%d], 0 offset:56" % (V_TMP, S_DBG, S_DBG + 3))
        a.e("s_memrealtime s[%d:%d]" % (S_TM, S_TM + 1))
        a.e("s_waitcnt lgkmcnt(0)")
        a.e("v_mov_b32 v%d, s%d" % (V_TMP, S_TM))
        a.lines.append("    buffer_store_dword v%d, off, s[%d:%d], 0 offset:52" % (V_TMP, S_DBG, S_DBG + 3))
    S_VEM, S_VEO = S_VR, S_PR
    a.e("s_mul_i32 s%d, s%d, %d" % (S_VEM, S_GRP, VSLOT))
    a.e("s_add_u32 s%d, s%d, s%d" % (S_VEM, S_VEM, S_M0W))
    a.e("s_mul_i32 s%d, s%d, %d" % (S_VEO, S_GRP, vgoff(1) - vgoff(0)))
    a.e("s_add_u32 s%d, s%d, 0x%x" % (S_VEO, S_VEO, vgoff(0)))

    def v_early():
        for cg in range(3):
            a.e("s_add_u32 m0, s%d, 0x%x" % (S_VEM, VBASE + 4096 * cg - 128 * cg))
            a.e("s_nop 0")
            if not opt.get("nov"):
                a.e("buffer_load_dwordx4 v%d, s[%d:%d], s%d offen offset:%d%s lds" % (
                    V_VOFFV, S_V, S_V + 3, S_VEO, 128 * cg, NT), "ve")

    def v_panel(k):
        if k == 0:
            a.e("s_mul_i32 s%d, s%d, 3072" % (S_T3, S_WS))
            a.e("v_subrev_u32 v%d, s%d, v%d" % (V_VK0, S_T3, V_VOFFV))
            a.e("s_and_b32 s%d, s%d, 1" % (S_T3, S_WS))
            a.e("s_lshl_b32 s%d, s%d, 6" % (S_T3, S_T3))
            a.e("v_xor_b32 v%d, s%d, v%d" % (V_VK0, S_T3, V_VK0))
            a.e("v_xor_b32 v%d, 64, v%d" % (V_VK1, V_VK0))
        for i in range(4):
            a.e("s_add_u32 m0, s%d, 0x%x" % (S_M0K, k * 4096 + i * 1024))
            a.e("s_add_u32 s%d, s%d, %d" % (S_T3, (S_PA, S_PB)[k], i * 3072))
            if not opt.get("nov"):
                a.e("buffer_load_dwordx4 v%d, s[%d:%d], s%d offen%s lds" % (
                    (V_VK0, V_VK1)[i & 1], S_V, S_V + 3, S_T3, NT), "p%d" % k)

    a.e("s_cmp_eq_u32 s%d, 0" % S_TYPE)
    a.e("s_cbranch_scc1 LA_p1")
    a.vm = []
    for p in range(KR):
        k_issue(p)
    for p in range(12):
        k_take(p)
    a.e("s_barrier")
    stamp(a, 1, dbgv)
    a.label("LA_p1")
    a.e("s_cmp_eq_u32 s%d, 0" % S_GRP)
    a.e("s_cbranch_scc0 LA_p1_g1")
    for grp in (0, 1):
        a.vm = []
        tiles = [5, 6, 7, 8] if grp == 0 else [0, 1, 2, 3, 4]
        if grp == 1:
            a.label("LA_p1_g1")
        for c in range(2):
            a.grp(dma_chunk(grp, c, c))
        vmwait(0)
        a.label("LA_p1_re%d" % grp)
        a.e("s_barrier")
        a.grp(p1_reads(tiles, 0))
        pend = []
        for step in range(20):
            c = step >> 1
            oth = []
            if step & 1:
                if c + 1 < 10:
                    vmwait(c + 1, " lgkmcnt(0)")
                else:
                    a.e("s_waitcnt lgkmcnt(0)")
                a.e("s_barrier")
                if opt.get("dbg2"):
                    a.e("s_memtime s[%d:%d]" % (66 + 2 * c, 67 + 2 * c))
            else:
                a.e("s_waitcnt lgkmcnt(0)")
            if step + 1 < 20:
                oth = p1_reads(tiles, step + 1)
            dm = []
            if step == 0:
                dm = dma_chunk(grp, 2, 2)
            if (step & 1) and c + 3 < 10:
                full = dma_chunk(grp, c % NCH, c + 3)
                hsplit = 4 if grp == 0 else 3
                dm, pend = full[:hsplit], full[hsplit:]
            elif pend:
                dm, pend = pend, []
            mf = p1_mfmas(tiles, step & 1, step == 0)
            if opt.get("nomf"):
                mf = ["s_nop 0"] * len(mf)
            if opt.get("nord"):
                oth = []
            nm = len(mf)
            ri = di = 0
            for i, m in enumerate(mf):
                a.e(m)
                k = -(-(len(oth) - ri) // (nm - i))
                for _ in range(k):
                    a.g1(oth[ri])
                    ri += 1
                if di < len(dm) and (i + 1) * len(dm) >= (di + 1) * nm - nm // 2:
                    a.g1(dm[di])
                    di += 1
            while di < len(dm):
                a.g1(dm[di])
                di += 1
        if opt.get("touch", 2) == 1:
            l = a.newlabel("LA_tx")
            a.e("s_cmp_eq_u32 s%d, 0" % S_TASK)
            a.e("s_cbranch_scc0 %s" % l)
            a.e("s_lshr_b32 s%d, s%d, 1" % (S_T3, S_HI))
            a.e("s_mul_i32 s%d, s%d, 360" % (S_T3, S_T3))
            a.e("s_mul_i32 s%d, s%d, 45" % (S_TQ, S_WAVE))
            a.e("s_add_u32 s%d, s%d, s%d" % (S_T3, S_T3, S_TQ))
            a.e("v_min_u32 v%d, 44, v0" % V_X1)
            a.e("v_add_u32 v%d, s%d, v%d" % (V_X1, S_T3, V_X1))
            a.e("v_lshlrev_b32 v%d, 7, v%d" % (V_X1, V_X1))
            a.e("buffer_load_dword v%d, v%d, s[%d:%d], 0 offen" % (V_TMP, V_X1, S_XN, S_XN + 3))
            a.label(l)
        l = a.newlabel("LA_ks")
        a.e("s_cmp_eq_u32 s%d, 0" % S_TYPE)
        a.e("s_cbranch_scc0 %s" % l)
        a.vm = []
        for p in range(KR):
            k_issue(p)
        a.label(l)
        a.e("s_nop 7")
        for j, t in enumerate(tiles):
            for tau in range(3):
                acc = V_ACC1 + (j * 3 + tau) * 4
                a.e("v_cvt_pk_bf16_f32 v%d, v%d, v%d" % (acc, acc, acc + 1))
                a.e("v_cvt_pk_bf16_f32 v%d, v%d, v%d" % (acc + 1, acc + 2, acc + 3))
                a.e("ds_write_b64 v%d, %s offset:%d" % (V_QW + tau, vr(acc, 2), t * 1024))
        a.e("s_waitcnt lgkmcnt(0)")
        if grp == 0:
            a.e("s_branch LA_p1_done")
    a.label("LA_p1_done")
    stamp(a, 2, dbgv)
    if opt.get("dbg2"):
        for c in range(10):
            a.e("v_mov_b32 v%d, s%d" % (V_TMP, 66 + 2 * c))
            a.lines.append("    buffer_store_dword v%d, off, s[%d:%d], 0 offset:%d" % (V_TMP, S_DBG, S_DBG + 3, 64 + 4 * c))
    a.e("s_barrier")
    stamp(a, 3, dbgv)
    vm_save = list(a.vm)
    a.e("s_cmp_eq_u32 s%d, 0" % S_TYPE)
    a.e("s_cbranch_scc1 LA_p2_go")
    v_early()
    v_panel(0)
    a.label("LA_p2_go")
    a.vm = vm_save
    seq = [(ub, s, t) for ub in range(2) for s in range(6) for t in range(9)]
    QB = ([88, 92, 96, 100, 104, 108], [188, 192, 196, 200, 4, 8])
    PD = 4

    def qbuf(i):
        return QB[seq[i][0]][i % 6]

    def qread(i):
        ub, s, t = seq[i]
        return "ds_read_b128 %s, v%d offset:%d" % (vr(qbuf(i), 4), V_L16, (s * 9 + t) * 1024)

    def blk(ub, t):
        return [S(kt, t) + r for kt in (2 * ub, 2 * ub + 1) for r in range(4)]

    def exp_stream(ub, t, tmp, first):
        v = blk(ub, t)
        L = []
        for x in v:
            L.append("v_fma_f32 v%d, v%d, s%d, -v%d" % (x, x, S_C, V_MC + t))
        for x in v:
            L.append("v_exp_f32 v%d, v%d" % (x, x))
        for k in range(4):
            L.append("v_add_f32 v%d, v%d, v%d" % (tmp + k, v[k], v[k + 4]))
        L.append("v_add_f32 v%d, v%d, v%d" % (tmp, tmp, tmp + 1))
        L.append("v_add_f32 v%d, v%d, v%d" % (tmp + 2, tmp + 2, tmp + 3))
        if first:
            L.append("v_add_f32 v%d, v%d, v%d" % (V_SUM + t, tmp, tmp + 2))
        else:
            L.append("v_add_f32 v%d, v%d, v%d" % (tmp, tmp, tmp + 2))
            L.append("v_add_f32 v%d, v%d, v%d" % (V_SUM + t, V_SUM + t, tmp))
        return L

    va = []
    for t in range(9):
        v = blk(0, t)
        m = V_MC + t
        va.append("v_max3_f32 v%d, v%d, v%d, v%d" % (m, v[0], v[1], v[2]))
        va.append("v_max3_f32 v%d, v%d, v%d, v%d" % (V_RT, v[3], v[4], v[5]))
        va.append("v_max3_f32 v%d, v%d, v%d, v%d" % (m, m, v[6], v[7]))
        va.append("v_max_f32 v%d, v%d, v%d" % (m, m, V_RT))
        va.append("v_mul_f32 v%d, s%d, v%d" % (m, S_C, m))
        va += exp_stream(0, t, V_RT, True)
    vai = 0
    for i in range(PD):
        a.e(qread(i))
    n = len(seq)
    PP = opt.get("pp", 1)
    nva1 = opt.get("nva1", 6)
    per_tile = len(va) // 9
    if PP:
        a.e("s_setprio 2")
    for i, (ub, s, t) in enumerate(seq):
        if PP and i == 54:
            a.e("s_setprio 0")
            a.e("s_nop 4")
            for ins in va[:nva1 * per_tile]:
                a.e(ins)
            vai = nva1 * per_tile
            a.e("s_setprio 2")
        if t == 0 and s % 2 == 0 and opt.get("dbg4"):
            a.e("s_memtime s[%d:%d]" % (66 + 4 * (ub * 3 + s // 2), 67 + 4 * (ub * 3 + s // 2)))
        if t == 0 and s % 2 == 0:
            l = a.newlabel("LA_kt")
            a.e("s_cmp_eq_u32 s%d, 0" % S_TYPE)
            a.e("s_cbranch_scc0 %s" % l)
            p0 = ub * 6 + s
            k_take(p0)
            k_take(p0 + 1)
            if p0 == 6:
                v_early()
            if p0 == 10:
                v_panel(0)
            a.label(l)
            if opt.get("dbg4"):
                a.e("s_memtime s[%d:%d]" % (68 + 4 * (ub * 3 + s // 2), 69 + 4 * (ub * 3 + s // 2)))
                a.e("s_waitcnt lgkmcnt(0)")
        if i + PD < n:
            a.e(qread(i + PD))
            a.e("s_waitcnt lgkmcnt(%d)" % PD)
        else:
            a.e("s_waitcnt lgkmcnt(%d)" % (n - 1 - i))
        for k in range(2):
            kt = 2 * ub + k
            cc = "0" if s == 0 else vr(S(kt, t), 4)
            a.e("v_mfma_f32_16x16x32_bf16 %s, %s, %s, %s" % (
                vr(S(kt, t), 4), vr(Kf(kt, s), 4), vr(qbuf(i), 4), cc))
            if not PP and ub == 1 and i >= 54 + 3:
                rem = 2 * (n - i) - k
                cnt = -(-(len(va) - vai) // rem)
                for _ in range(cnt):
                    a.e(va[vai])
                    vai += 1
    if PP:
        a.e("s_setprio 0")
        for ins in va[vai:]:
            a.e(ins)
        vai = len(va)
    assert vai == len(va)
    v_panel(1)
    stamp(a, 4, dbgv)
    if opt.get("dbg4"):
        for c in range(12):
            a.e("v_mov_b32 v%d, s%d" % (V_TMP, 66 + 2 * c))
            a.lines.append("    buffer_store_dword v%d, off, s[%d:%d], 0 offset:%d" % (V_TMP, S_DBG, S_DBG + 3, 64 + 4 * c))
    MB = V_RT + 60
    a.e("v_and_b32 v%d, 15, v0" % V_Y)
    a.e("v_lshlrev_b32 v%d, 5, v%d" % (V_Y, V_Y))
    a.e("s_lshl_b32 s%d, s%d, 2" % (S_T3, S_WAVE))
    a.e("v_add_u32 v%d, s%d, v%d" % (V_YW, S_T3, V_Y))
    a.e("s_nop 4")
    for stp in range(5):
        for t in range(9):
            v = blk(1, t)
            m = MB + t
            if stp == 0:
                a.e("v_max3_f32 v%d, v%d, v%d, v%d" % (m, v[0], v[1], v[2]))
            elif stp < 3:
                a.e("v_max3_f32 v%d, v%d, v%d, v%d" % (m, m, v[1 + 2 * stp], v[2 + 2 * stp]))
            elif stp == 3:
                a.e("v_max_f32 v%d, v%d, v%d" % (m, m, v[7]))
            else:
                a.e("v_mul_f32 v%d, s%d, v%d" % (m, S_C, m))
    for t in range(9):
        a.e("v_max_f32 v%d, v%d, v%d" % (MB + t, MB + t, V_MC + t))
    xlane_reduce(a, [MB + t for t in range(9)], [V_RT + t for t in range(9)], "v_max_f32")
    for t in range(9):
        a.e("ds_write_b32 v%d, v%d offset:%d" % (V_YW, MB + t, MAXB + t * 512))
    a.e("s_waitcnt lgkmcnt(0)")
    a.e("s_barrier")
    RT = V_RT
    for t in range(9):
        a.e("ds_read_b128 %s, v%d offset:%d" % (vr(RT + t * 8, 4), V_Y, MAXB + t * 512))
        a.e("ds_read_b128 %s, v%d offset:%d" % (vr(RT + t * 8 + 4, 4), V_Y, MAXB + t * 512 + 16))
    tr_addr(V_TVL, VBASE, V_PB1, V_PW)
    a.e("v_add_u32 v%d, 0x%x, v%d" % (V_PB1, 4 * PSLOT, V_L16))
    a.e("s_mul_i32 s%d, s%d, %d" % (S_T3, S_WAVE, PSLOT))
    a.e("v_add_u32 v%d, s%d, v%d" % (V_PW, S_T3, V_L16))
    a.e("s_waitcnt lgkmcnt(0)")
    a.e("s_barrier")
    for t in range(9):
        b = RT + t * 8
        a.e("v_max3_f32 v%d, v%d, v%d, v%d" % (b, b, b + 1, b + 2))
        a.e("v_max3_f32 v%d, v%d, v%d, v%d" % (b + 3, b + 3, b + 4, b + 5))
        a.e("v_max3_f32 v%d, v%d, v%d, v%d" % (b, b, b + 6, b + 7))
    for t in range(9):
        b = RT + t * 8
        a.e("v_max_f32 v%d, v%d, v%d" % (b, b, b + 3))
    for t in range(9):
        b = RT + t * 8
        a.e("v_sub_f32 v%d, v%d, v%d" % (b + 2, V_MC + t, b))
    for t in range(9):
        b = RT + t * 8
        a.e("v_exp_f32 v%d, v%d" % (b + 2, b + 2))
        a.e("v_mov_b32 v%d, v%d" % (V_MC + t, b))
    for t in range(9):
        b = RT + t * 8
        v = blk(0, t)
        for k in range(4):
            a.e("v_pk_mul_f32 %s, %s, %s op_sel_hi:[1,0]" % (vr(v[2 * k], 2), vr(v[2 * k], 2), vr(b + 2, 2)))
        a.e("v_mul_f32 v%d, v%d, v%d" % (V_SUM + t, V_SUM + t, b + 2))
        d = S(0, t)
        for k in range(4):
            a.e("v_cvt_pk_bf16_f32 v%d, v%d, v%d" % (d + k, v[2 * k], v[2 * k + 1]))
        a.e("ds_write_b128 v%d, %s offset:%d" % (V_PW, vr(d, 4), t * 1024))
    for tau in range(3):
        a.e("v_add_u32 v%d, 0x%x, v%d" % (V_TVH + tau, 4 * VSLOT, V_TVL + tau))
    stamp(a, 5, dbgv)
    a.e("s_cmp_eq_u32 s%d, 0" % S_GRP)
    a.e("s_cbranch_scc0 LA_p3_g1")

    def p3_reads(tiles, step):
        fset = step & 1
        vs = step % NV
        tb, vo = (V_TVL, vs * VSLOT) if vs < 4 else (V_TVH, (vs - 4) * VSLOT)
        ps = border[step & 7]
        pb, po = (V_PB0, ps * PSLOT) if ps < 4 else (V_PB1, (ps - 4) * PSLOT)
        L = []
        for tau in range(3):
            d = V_A3[fset] + tau * 4
            L.append(["ds_read_b64_tr_b16 %s, v%d offset:%d" % (vr(d, 2), tb + tau, vo)])
            L.append(["ds_read_b64_tr_b16 %s, v%d offset:%d" % (vr(d + 2, 2), tb + tau, vo + 512)])
        for j, t in enumerate(tiles):
            d = V_B3[fset] + j * 4
            L.append(["ds_read_b128 %s, v%d offset:%d" % (vr(d, 4), pb, po + t * 1024)])
        return L

    def p3_mfmas(tiles, step):
        fset = step & 1
        M = []
        for j, t in enumerate(tiles):
            for tau in range(3):
                acc = V_ACC3 + (j * 3 + tau) * 4
                M.append("v_mfma_f32_16x16x32_bf16 %s, %s, %s, %s" % (
                    vr(acc, 4), vr(V_A3[fset] + tau * 4, 4), vr(V_B3[fset] + j * 4, 4),
                    "0" if step == 0 else vr(acc, 4)))
        return M

    SUMB = 4 * PSLOT
    OST = 2 * CH
    for grp in (0, 1):
        tiles = [0, 1, 2, 3, 4] if grp == 0 else [5, 6, 7, 8]
        vb = []
        for t in range(9):
            vb += exp_stream(1, t, V_ET + 4 * (t & 1), False)
            v = blk(1, t)
            d = S(2, t)
            for k in range(4):
                vb.append("v_cvt_pk_bf16_f32 v%d, v%d, v%d" % (d + k, v[2 * k], v[2 * k + 1]))
        c0b, c0e = opt.get("c0b", 0), opt.get("c0e", 10)
        cbeg, cend = (c0b, c0e) if grp == 0 else (0, 6)
        if grp == 0:
            wsteps = {7: [0, 1], 8: [2, 3, 4], 9: [5, 6], 10: [7, 8]}
        else:
            wsteps = {3: [0, 1], 4: [2, 3, 4], 5: [5, 6], 6: [7, 8]}
        xs = Asm()
        xlane_reduce(xs, [V_SUM + t for t in range(9)], [V_ET + t for t in range(9)], "v_add_f32")
        xl = [l.strip() for l in xs.lines if "s_nop" not in l]
        xstep = 12 if grp == 0 else 11
        pubstep = xstep + 1
        if grp == 1:
            a.label("LA_p3_g1")
        a.vm = ["ve"] * 3 + ["p0"] * 4 + ["p1"] * 4
        if opt.get("nov"):
            a.vm = []
        vmwait("ve", " lgkmcnt(0)")
        a.e("s_barrier")
        a.grp(p3_reads(tiles, 0))
        vbi = 0
        for step in range(16):
            if 1 <= step <= 5 and not opt.get("nov"):
                la, lb = a.newlabel("LA_wa"), a.newlabel("LA_wb")
                a.e("s_cmp_le_u32 s%d, %d" % (S_TA, step + 1))
                a.e("s_cbranch_scc0 %s" % lb)
                a.e("s_waitcnt vmcnt(%d)" % a.vmn("p0"))
                a.e("s_cmp_le_u32 s%d, %d" % (S_TB, step + 1))
                a.e("s_cbranch_scc0 %s" % lb)
                a.e("s_waitcnt vmcnt(%d)" % a.vmn("p1"))
                a.label(lb)
                a.e("s_waitcnt lgkmcnt(0)")
            elif grp == 1 and 6 <= step < 15:
                vmwait(("v", step + 1), " lgkmcnt(0)")
            else:
                a.e("s_waitcnt lgkmcnt(0)")
            a.e("s_barrier")
            if opt.get("dbg3") and step < 15:
                a.e("s_memtime s[%d:%d]" % (66 + 2 * step, 67 + 2 * step))
            oth = p3_reads(tiles, step + 1) if step < 15 else []
            if grp == 1 and step + NV < 16:
                oth = oth + v_dma_const(step + NV, step % NV)
            valu = []
            if cbeg <= step < cend:
                k = -(-(len(vb) - vbi) // (cend - step))
                valu = vb[vbi:vbi + k]
                vbi += k
            if step == xstep:
                valu = xl
            tail = []
            if step in wsteps:
                for t in wsteps[step]:
                    tail.append(["ds_write_b128 v%d, %s offset:%d" % (V_PW, vr(S(2, t), 4), t * 1024)])
            if step == pubstep:
                for t in range(9):
                    tail.append(["ds_write_b32 v%d, v%d offset:%d" % (V_YW, V_SUM + t, SUMB + t * 512)])
            mf = p3_mfmas(tiles, step)
            if step == opt.get("tstep", 9) and opt.get("touch", 2) == 2:
                T1, TD = 46, 87
                l2, l3 = a.newlabel("LA_t2"), a.newlabel("LA_t3")
                a.e("s_cmp_eq_u32 s%d, 0" % S_TASK)
                a.e("s_cbranch_scc0 %s" % l2)
                a.e("s_lshr_b32 s%d, s%d, 1" % (S_T3, S_HI))
                a.e("s_mul_i32 s%d, s%d, 360" % (S_T3, S_T3))
                a.e("s_mul_i32 s%d, s%d, 45" % (S_TQ, S_WAVE))
                a.e("s_add_u32 s%d, s%d, s%d" % (S_T3, S_T3, S_TQ))
                a.e("v_min_u32 v%d, 44, v0" % T1)
                a.e("v_add_u32 v%d, s%d, v%d" % (T1, S_T3, T1))
                a.e("v_lshlrev_b32 v%d, 7, v%d" % (T1, T1))
                a.e("buffer_load_dword v%d, v%d, s[%d:%d], 0 offen" % (TD, T1, S_XN, S_XN + 3), "t")
                a.e("s_branch %s" % l3)
                a.label(l2)
                a.e("s_mul_i32 s%d, s%d, 7680" % (S_T3, S_WAVE))
                a.e("v_min_u32 v%d, 59, v0" % T1)
                a.e("v_lshlrev_b32 v%d, 7, v%d" % (T1, T1))
                a.lines.append("    buffer_load_dword v%d, v%d, s[%d:%d], s%d offen" % (TD, T1, S_WO, S_WO + 3, S_T3))
                a.label(l3)

            def cost(ins):
                return 2 if ins.startswith("v_exp") else 1

            def take(lst, slots):
                k = c = 0
                while k < len(lst) and c + cost(lst[k]) <= slots:
                    c += cost(lst[k])
                    k += 1
                return lst[:k], lst[k:]

            def mixed(mf, mem, valu):
                nm = len(mf)
                mi = 0
                for i, m in enumerate(mf):
                    a.e(m)
                    k = -(-(len(mem) - mi) // (nm - i))
                    for _ in range(k):
                        a.g1(mem[mi])
                        mi += 1
                    now, valu = take(valu, 2)
                    for ins in now:
                        a.e(ins)
                return valu
            rd = [g for g in oth if g[0].startswith("ds_read")]
            dm = [g for g in oth if not g[0].startswith("ds_read")]
            mem = rd + tail + dm
            nm = len(mf)
            span = max(1, int(nm * opt.get("span", 70) / 100))
            mi = vi = 0
            for i, m in enumerate(mf):
                a.e(m)
                k = -(-(len(mem) - mi) // max(span - i, 1))
                for _ in range(k):
                    a.g1(mem[mi])
                    mi += 1
                k = -(-(len(valu) - vi) // (nm - i))
                for _ in range(k):
                    a.e(valu[vi])
                    vi += 1
        assert vbi == len(vb)
        stamp(a, 6, dbgv)
        if opt.get("dbg3"):
            for c in range(15):
                a.e("v_mov_b32 v%d, s%d" % (V_TMP, 66 + 2 * c))
                a.lines.append("    buffer_store_dword v%d, off, s[%d:%d], 0 offset:%d" % (V_TMP, S_DBG, S_DBG + 3, 64 + 4 * c))
        ST = 88
        for j, t in enumerate(tiles):
            a.e("ds_read_b128 %s, v%d offset:%d" % (vr(ST + j * 8, 4), V_Y, SUMB + t * 512))
            a.e("ds_read_b128 %s, v%d offset:%d" % (vr(ST + j * 8 + 4, 4), V_Y, SUMB + t * 512 + 16))
        qw_addr(V_QW3)
        for tau in range(3):
            a.e("v_add_u32 v%d, 0x%x, v%d" % (V_QW3 + tau, OST, V_QW3 + tau))
        a.e("s_waitcnt lgkmcnt(0)")
        for j, t in enumerate(tiles):
            b = ST + j * 8
            for k in range(4):
                a.e("v_add_f32 v%d, v%d, v%d" % (b + k, b + k, b + k + 4))
        for j, t in enumerate(tiles):
            b = ST + j * 8
            a.e("v_add_f32 v%d, v%d, v%d" % (b, b, b + 1))
            a.e("v_add_f32 v%d, v%d, v%d" % (b + 2, b + 2, b + 3))
        for j, t in enumerate(tiles):
            b = ST + j * 8
            a.e("v_add_f32 v%d, v%d, v%d" % (b, b, b + 2))
        for j, t in enumerate(tiles):
            a.e("v_rcp_f32 v%d, v%d" % (ST + j * 8, ST + j * 8))
        a.e("s_nop 0")
        for j, t in enumerate(tiles):
            for tau in range(3):
                acc = V_ACC3 + (j * 3 + tau) * 4
                for r in range(2):
                    a.e("v_pk_mul_f32 %s, %s, %s op_sel_hi:[1,0]" % (
                        vr(acc + 2 * r, 2), vr(acc + 2 * r, 2), vr(ST + j * 8, 2)))
                a.e("v_cvt_pk_bf16_f32 v%d, v%d, v%d" % (acc, acc, acc + 1))
                a.e("v_cvt_pk_bf16_f32 v%d, v%d, v%d" % (acc + 1, acc + 2, acc + 3))
                a.e("ds_write_b64 v%d, %s offset:%d" % (V_QW3 + tau, vr(acc, 2), t * 1024))
        addr_dma()
        a.e("s_mul_i32 s%d, s%d, 7168" % (S_T3, S_WAVE))
        a.e("v_add_u32 v%d, s%d, v%d" % (V_YW, S_T3, V_L16))
        a.e("v_add_u32 v%d, 0x%x, v%d" % (V_Y, OST, V_YW))
        a.e("s_waitcnt lgkmcnt(0)")
        a.e("s_barrier")
        for k in range(7):
            a.e("ds_read_b128 %s, v%d offset:%d" % (vr(16 + 4 * k, 4), V_Y, k * 1024))
        lnx = a.newlabel("LA_nx")
        a.e("s_cmp_eq_u32 s%d, 0" % S_TASK)
        a.e("s_cbranch_scc0 %s" % lnx)
        a.e("s_mov_b32 s%d, s%d" % (S_X, S_XN))
        a.e("s_mov_b32 s%d, s%d" % (S_X + 1, S_XN + 1))
        a.vm = []
        pg = grp
        for c in range(2):
            a.grp(dma_chunk(pg, c, c))
        a.label(lnx)
        ONT = ("", " nt", " sc1", " sc0 sc1")[opt.get("ont", 3)]
        for k in range(7):
            a.e("s_waitcnt lgkmcnt(%d)" % (6 - k))
            a.e("s_mov_b32 s%d, %d" % (S_T3, k * 1024))
            a.e("buffer_store_dwordx4 %s, v%d, s[%d:%d], s%d offen%s" % (vr(16 + 4 * k, 4), V_YW, S_O, S_O + 3, S_T3, ONT))
        stamp(a, 7, dbgv)
        if dbg:
            a.e("s_memrealtime s[%d:%d]" % (S_TM, S_TM + 1))
            a.e("s_waitcnt lgkmcnt(0)")
            a.e("v_mov_b32 v%d, s%d" % (V_TMP, S_TM))
            a.lines.append("    buffer_store_dword v%d, off, s[%d:%d], 0 offset:48" % (V_TMP, S_DBG, S_DBG + 3))
        a.e("s_cmp_eq_u32 s%d, 0" % S_TASK)
        a.e("s_cbranch_scc0 LA_end")
        a.e("s_mov_b32 s%d, 1" % S_TASK)
        a.e("s_mov_b32 s%d, 0" % S_TYPE)
        for srd, adv in ((S_K, 128 * 196608), (S_V, 128 * 196608), (S_O, 128 * O_TASK)):
            a.e("s_add_u32 s%d, s%d, %d" % (srd, srd, adv))
            a.e("s_addc_u32 s%d, s%d, 0" % (srd + 1, srd + 1))
        if dbg:
            a.e("s_add_u32 s%d, s%d, %d" % (S_DBG, S_DBG, 256 * 8 * 128))
            a.e("s_addc_u32 s%d, s%d, 0" % (S_DBG + 1, S_DBG + 1))
            stamp(a, 0, dbgv)
            a.e("s_memrealtime s[%d:%d]" % (S_TM, S_TM + 1))
            a.e("s_waitcnt lgkmcnt(0)")
            a.e("v_mov_b32 v%d, s%d" % (V_TMP, S_TM))
            a.lines.append("    buffer_store_dword v%d, off, s[%d:%d], 0 offset:52" % (V_TMP, S_DBG, S_DBG + 3))
        addr_rest()
        vmwait(0)
        a.e("s_branch LA_p1_re%d" % pg)
    a.label("LA_end")
    a.e("s_endpgm")


def kd(name, vgpr, sgpr=102):
    return """.amdhsa_kernel %s
  .amdhsa_next_free_vgpr %d
  .amdhsa_next_free_sgpr %d
  .amdhsa_accum_offset %d
  .amdhsa_group_segment_fixed_size 0
  .amdhsa_kernarg_size 104
  .amdhsa_user_sgpr_count 2
  .amdhsa_user_sgpr_kernarg_segment_ptr 1
  .amdhsa_system_sgpr_workgroup_id_x 1
.end_amdhsa_kernel
""" % (name, vgpr, sgpr, (vgpr + 3) // 4 * 4)


def build(opt):
    a = Asm()
    hdr = open("cdna_kernels/%s.s.ref" % NAME).read().splitlines()
    hdr = [l for l in hdr if l.startswith(";") and "@launch" not in l and "Override" not in l and "grid=ceil" not in l]
    import genb
    launches = ["; @launch kernel=attn_kernel grid=(256,1,1) block=(512,1,1) lds=%d" % LDS_A,
                "; @launch kernel=oproj_kernel grid=(256,1,1) block=(512,1,1) lds=%d" % genb.LDS_B]
    out = "\n".join(hdr + launches) + "\n"
    out += '.amdgcn_target "amdgcn-amd-amdhsa--gfx950"\n.text\n'
    gen_attn(a, opt)
    genb.gen_oproj(a, opt)
    out += a.text()
    out += '.section .rodata,"a"\n.p2align 6\n'
    out += kd("attn_kernel", 256)
    out += ".p2align 6\n" + kd("oproj_kernel", genb.NVGPR_B)
    return out


if __name__ == "__main__":
    opt = {}
    outp = "k.s"
    for arg in sys.argv[1:]:
        if "=" in arg:
            k, v = arg.split("=")
            if k == "out":
                outp = v
            else:
                opt[k] = int(v)
    open(outp, "w").write(build(opt))
```

```python
import sys, math, struct

NAME = "concat_heads__mha_block_cached__mha_block_cached__near_ridge"


class Asm:
    def __init__(self):
        self.lines = []
        self.uid = 0
        self.vm = []

    def e(self, s, tag=None):
        self.lines.append("    " + s)
        if s.startswith("buffer_") or s.startswith("global_"):
            self.vm.append(tag)

    def grp(self, groups):
        for g in groups:
            self.g1(g)

    def g1(self, g):
        for ins in g:
            if isinstance(ins, tuple):
                self.e(ins[0], ins[1])
            else:
                self.e(ins)

    def vmn(self, tag):
        idx = [i for i, t in enumerate(self.vm) if t == tag]
        assert idx, tag
        n = len(self.vm) - 1 - idx[-1]
        assert n <= 63, n
        return n

    def c(self, s):
        self.lines.append("    ; " + s)

    def label(self, l):
        self.lines.append(l + ":")

    def newlabel(self, p="L"):
        self.uid += 1
        return "%s_%d" % (p, self.uid)

    def text(self):
        return "\n".join(self.lines) + "\n"


def vr(b, n=1):
    return "v%d" % b if n == 1 else "v[%d:%d]" % (b, b + n - 1)


def f32(x):
    return struct.unpack("<I", struct.pack("<f", x))[0]


def interleave(a, mfmas, others, lead=1, span=None):
    n = len(mfmas) if span is None else min(span, len(mfmas))
    m = len(others)
    oi = 0
    for i, mf in enumerate(mfmas):
        a.e(mf)
        if i + 1 >= lead and oi < m:
            rem = max(n - i, 1)
            k = -(-(m - oi) // rem)
            for _ in range(k):
                a.g1(others[oi])
                oi += 1
    while oi < m:
        a.g1(others[oi])
        oi += 1


CH = 43008
XLOC = (0, 67584, 86016)
WLOC = (18432, 43008, 104448)
NCH = 3
KST = 98304
KR = 4
S_PA, S_PB, S_TA, S_TB = 0, 1, 2, 3
VBASE = 73728
VSLOT = 12288
NV = 7
PSLOT = 9216
REDB = 159744
LDS_A = 163840
O_TASK = 55296
MAXB = 55296
SUMB = 159744 - 512

S_X, S_W, S_K, S_V, S_O = 4, 8, 12, 16, 20
S_WAVE, S_WS, S_GRP = 24, 25, 26
S_T0, S_T1, S_T2, S_T3 = 27, 28, 29, 30
S_KX, S_KW = 31, 32
S_M0X, S_M0W = 33, 34
S_TYPE = 35
S_C = 36
S_M0K = 37
S_VR, S_PR = 38, 39
S_CH = 43
S_PTR = 44
S_WSP = 52
S_P, S_B, S_H = 54, 55, 56
S_TQ = 57
S_HI, S_TASK = 58, 59
S_FLOW, S_PARK = 90, 91
S_Q2 = 92
S_QW = 40
S_DE, S_DC = 96, 99
S_WO = 48
S_XN = 44
S_DBG = 60
S_TM = 64

V_LANE, V_L16, V_VOFFV, V_TMP = 0, 1, 2, 3
V_QF = 4
V_S = 16
V_K = 160
V_ACC1, V_A1, V_B1 = 16, 76, 100
V_TRA, V_TRB, V_XA, V_XB = 140, 143, 146, 148
V_VX0, V_VX1, V_VW = 152, 153, 154
V_QW = 155
V_X1, V_X2, V_X3, V_X4 = 4, 5, 6, 7
V_VK0, V_VK1, V_KR0, V_KR1 = 12, 13, 14, 15
V_MC = 160
V_SUM = 169
V_RT = 180
V_ACC3 = 180
V_A3 = (240, 72)
V_B3 = (16, 52)
V_ET = 36
V_TVL, V_TVH = 4, 84
V_PB0, V_PB1 = 1, 8
V_PW = 9
V_Y, V_YW = 10, 11
V_QW3 = 12
V_ONE = 252


def S(kt, t):
    return V_S + (kt * 9 + t) * 4


def Kf(kt, s):
    return V_K + (kt * 6 + s) * 4


CLK = "s_memtime"


def stamp(a, idx, dbg):
    if not dbg:
        return
    a.e("%s s[%d:%d]" % (CLK, S_TM, S_TM + 1))
    a.e("s_waitcnt lgkmcnt(0)")
    a.e("v_mov_b32 v%d, s%d" % (dbg, S_TM))
    a.lines.append("    buffer_store_dword v%d, off, s[%d:%d], 0 offset:%d" % (dbg, S_DBG, S_DBG + 3, idx * 4))


def xlane_reduce(a, regs, tmps, op):
    for sw in ("v_permlane32_swap_b32", "v_permlane16_swap_b32"):
        for r, t in zip(regs, tmps):
            a.e("v_mov_b32 v%d, v%d" % (t, r))
        a.e("s_nop 1")
        for r, t in zip(regs, tmps):
            a.e("%s v%d, v%d" % (sw, r, t))
        a.e("s_nop 1")
        for r, t in zip(regs, tmps):
            a.e("%s v%d, v%d, v%d" % (op, r, r, t))


def gen_attn(a, opt):
    dbg = opt.get("dbg", False)
    global CLK
    if opt.get("rt"):
        CLK = "s_memrealtime"
    kn = "attn_kernel"
    x0, x1 = V_XA, V_XA + 1

    def tr_addr(dst, base, t1, t2):
        a.e("v_lshrrev_b32 v%d, 4, v0" % t1)
        a.e("v_bfe_u32 v%d, v0, 2, 2" % t2)
        a.e("v_lshl_add_u32 v%d, v%d, 3, v%d" % (t1, t1, t2))
        a.e("v_and_b32 v%d, 3, v0" % t2)
        a.e("v_lshlrev_b32 v%d, 3, v%d" % (t2, t2))
        a.e("v_lshl_add_u32 v%d, v%d, 7, v%d" % (t1, t1, t2))
        a.e("v_bfe_u32 v%d, v0, 3, 2" % t2)
        for tau in range(3):
            a.e("v_xor_b32 v%d, s%d, v%d" % (dst + tau, S_DE + tau, t2))
            a.e("v_lshl_add_u32 v%d, v%d, 5, v%d" % (dst + tau, dst + tau, t1))
            a.e("s_add_u32 s%d, s%d, 0x%x" % (S_T3, S_DC + tau, base))
            a.e("v_add_u32 v%d, s%d, v%d" % (dst + tau, S_T3, dst + tau))

    def addr_dma(V_X1=V_X1, V_X2=V_X2, V_X3=V_X3, V_X4=V_X4):
        a.e("v_lshrrev_b32 v%d, 4, v0" % V_X1)
        a.e("v_lshrrev_b32 v%d, 3, v0" % V_X2)
        a.e("s_lshl_b32 s%d, s%d, 3" % (S_T3, S_WS))
        a.e("v_add_u32 v%d, s%d, v%d" % (V_X2, S_T3, V_X2))
        a.e("v_bfe_u32 v%d, v0, 1, 2" % V_X3)
        a.e("v_and_b32 v%d, 1, v%d" % (V_X4, V_X1))
        a.e("v_xor_b32 v%d, v%d, v%d" % (V_X3, V_X3, V_X4))
        a.e("s_and_b32 s%d, s%d, 1" % (S_T3, S_WS))
        a.e("s_lshl_b32 s%d, s%d, 1" % (S_T3, S_T3))
        a.e("v_xor_b32 v%d, s%d, v%d" % (V_X3, S_T3, V_X3))
        a.e("v_and_b32 v%d, 1, v0" % V_X4)
        a.e("v_lshlrev_b32 v%d, 4, v%d" % (V_X4, V_X4))
        a.e("v_lshl_add_u32 v%d, v%d, 5, v%d" % (V_X3, V_X3, V_X4))
        a.e("v_mul_u32_u24 v%d, 0x3000, v%d" % (V_VW, V_X2))
        a.e("v_add_u32 v%d, v%d, v%d" % (V_VW, V_VW, V_X3))
        a.e("v_mul_u32_u24 v%d, 0x180, v%d" % (V_VOFFV, V_X2))
        a.e("v_add_u32 v%d, v%d, v%d" % (V_VOFFV, V_VOFFV, V_X3))
        a.e("s_mul_i32 s%d, s%d, 36" % (S_T3, S_WS))
        a.e("v_lshrrev_b32 v%d, 3, v0" % V_X2)
        a.e("v_add_u32 v%d, s%d, v%d" % (V_X2, S_T3, V_X2))
        a.e("v_bfe_u32 v%d, v%d, 1, 3" % (V_X3, V_X2))
        a.e("v_and_b32 v%d, 7, v0" % V_X4)
        a.e("v_xor_b32 v%d, v%d, v%d" % (V_X3, V_X3, V_X4))
        a.e("v_lshlrev_b32 v%d, 4, v%d" % (V_X3, V_X3))
        a.e("v_mul_u32_u24 v%d, 0x500, v%d" % (V_X2, V_X2))
        a.e("v_add_u32 v%d, v%d, v%d" % (V_VX0, V_X2, V_X3))
        a.e("v_xor_b32 v%d, 64, v%d" % (V_X3, V_X3))
        a.e("v_add_u32 v%d, v%d, v%d" % (V_VX1, V_X2, V_X3))

    def qw_addr(dst):
        a.e("v_and_b32 v%d, 15, v0" % (dst + 2))
        a.e("v_lshlrev_b32 v%d, 4, v%d" % (dst + 2, dst + 2))
        a.e("v_lshrrev_b32 v%d, 5, v0" % dst)
        a.e("v_lshl_add_u32 v%d, v%d, 8, v%d" % (dst + 2, dst, dst + 2))
        a.e("v_bfe_u32 v%d, v0, 4, 1" % dst)
        a.e("v_lshl_add_u32 v%d, v%d, 3, v%d" % (dst + 2, dst, dst + 2))
        for tau in range(3):
            a.e("v_add_u32 v%d, s%d, v%d" % (dst + tau, S_QW + tau, dst + 2))

    def addr_rest():
        a.e("v_lshrrev_b32 v%d, 4, v0" % V_X1)
        a.e("v_and_b32 v%d, 15, v0" % V_X2)
        tr_addr(V_TRA, WLOC[0], V_X3, V_X4)
        for tau in range(3):
            a.e("v_add_u32 v%d, 0x%x, v%d" % (V_TRB + tau, WLOC[2] - WLOC[0], V_TRA + tau))
        a.e("v_lshrrev_b32 v%d, 1, v%d" % (V_X3, V_X2))
        a.e("v_xor_b32 v%d, v%d, v%d" % (V_X3, V_X3, V_X1))
        a.e("v_lshlrev_b32 v%d, 4, v%d" % (V_X3, V_X3))
        a.e("v_lshl_add_u32 v%d, v%d, 7, v%d" % (x0, V_X2, V_X3))
        a.e("v_xor_b32 v%d, 64, v%d" % (x1, x0))
        for k in range(2):
            a.e("v_add_u32 v%d, 0x%x, v%d" % (V_XB + k, XLOC[1], V_XA + k))
        a.e("v_add_u32 v%d, s%d, v%d" % (V_KR0, S_M0K, x0))
        a.e("v_add_u32 v%d, s%d, v%d" % (V_KR1, S_M0K, x1))
        a.e("v_bfe_u32 v%d, v0, 5, 1" % V_X2)
        a.e("v_bfe_u32 v%d, v0, 3, 2" % V_X3)
        a.e("v_lshl_add_u32 v%d, v%d, 3, v%d" % (V_X2, V_X2, V_X3))
        a.e("v_mul_u32_u24 v%d, 0x180, v%d" % (V_X2, V_X2))
        a.e("s_mul_i32 s%d, s%d, 24576" % (S_T3, S_WAVE))
        a.e("v_add_u32 v%d, s%d, v%d" % (V_X2, S_T3, V_X2))
        a.e("v_and_b32 v%d, 7, v0" % V_X4)
        a.e("v_xor_b32 v%d, v%d, v%d" % (V_X3, V_X4, V_X1))
        a.e("v_lshlrev_b32 v%d, 4, v%d" % (V_X3, V_X3))
        a.e("v_add_u32 v%d, v%d, v%d" % (V_VK0, V_X2, V_X3))
        a.e("v_xor_b32 v%d, 64, v%d" % (V_X3, V_X3))
        a.e("v_add_u32 v%d, v%d, v%d" % (V_VK1, V_X2, V_X3))
        a.e("v_add_u32 v%d, 0x%x, v%d" % (V_VK1, 16 * 384, V_VK1))
        qw_addr(V_QW)

    a.lines.append(".globl %s\n.p2align 8\n.type %s,@function" % (kn, kn))
    a.label(kn)
    a.e("s_cmp_ge_u32 s2, 256")
    a.e("s_cbranch_scc1 LA_end")
    a.e("s_and_b32 s%d, s2, 7" % S_T0)
    a.e("s_lshr_b32 s%d, s%d, 2" % (S_P, S_T0))
    a.e("s_mul_i32 s%d, s%d, 40" % (S_T2, S_P))
    a.e("s_add_u32 s%d, s0, s%d" % (S_T0 + 1, S_T2))
    a.e("s_addc_u32 s%d, s1, 0" % (S_T0 + 2))
    a.e("s_load_dwordx8 s[%d:%d], s[%d:%d], 0" % (S_PTR, S_PTR + 7, S_T0 + 1, S_T0 + 2))
    a.e("s_load_dwordx2 s[%d:%d], s[0:1], 96" % (S_WSP, S_WSP + 1))
    a.e("s_load_dwordx2 s[%d:%d], s[%d:%d], 32" % (S_TM, S_TM + 1, S_T0 + 1, S_T0 + 2))
    a.e("s_lshr_b32 s%d, s2, 3" % S_T3)
    a.e("s_and_b32 s%d, s%d, 3" % (S_H, S_T0))
    a.e("s_lshl_b32 s%d, s%d, 3" % (S_H, S_H))
    a.e("s_and_b32 s%d, s%d, 7" % (S_HI, S_T3))
    a.e("s_add_u32 s%d, s%d, s%d" % (S_H, S_H, S_HI))
    a.e("s_lshr_b32 s%d, s%d, 3" % (S_B, S_T3))
    a.e("s_and_b32 s%d, s%d, 1" % (S_TYPE, S_HI))
    a.e("s_cselect_b32 s%d, %d, %d" % (S_TYPE, opt.get("tb", 2), opt.get("ta", 0)))
    if "type" in opt:
        a.e("s_mov_b32 s%d, %d" % (S_TYPE, opt["type"]))
    a.e("s_lshr_b32 s%d, s%d, 1" % (S_CH, S_HI))
    a.e("s_add_u32 s%d, s%d, s%d" % (S_CH, S_CH, S_B))
    a.e("s_and_b32 s%d, s%d, 3" % (S_CH, S_CH))
    a.e("s_mul_i32 s%d, s%d, 5" % (S_CH, S_CH))
    a.e("s_lshr_b32 s%d, s%d, 1" % (S_CH, S_CH))
    if opt.get("norot"):
        a.e("s_mov_b32 s%d, 0" % S_CH)
    a.e("s_mov_b32 s%d, 0" % S_TASK)
    a.e("v_lshrrev_b32 v%d, 6, v0" % V_TMP)
    a.e("v_and_b32 v0, 63, v0")
    a.e("v_readfirstlane_b32 s%d, v%d" % (S_WAVE, V_TMP))
    a.e("v_lshlrev_b32 v%d, 4, v0" % V_L16)
    a.e("s_mov_b32 s%d, 0x%08x" % (S_C, f32((192 ** -0.5) * math.log2(math.e))))
    a.e("s_and_b32 s%d, s%d, 3" % (S_WS, S_WAVE))
    a.e("s_lshr_b32 s%d, s%d, 2" % (S_GRP, S_WAVE))
    a.e("s_lshl_b32 s%d, s%d, 13" % (S_M0K, S_WAVE))
    a.e("s_add_u32 s%d, s%d, 0x%x" % (S_M0K, S_M0K, KST))
    a.e("s_lshl_b32 s%d, s%d, 10" % (S_M0W, S_WS))
    a.e("s_mul_i32 s%d, s%d, 4608" % (S_M0X, S_WS))
    for tau in range(3):
        a.e("s_mul_i32 s%d, s%d, 3" % (S_T3, S_WS))
        a.e("s_add_u32 s%d, s%d, %d" % (S_T3, S_T3, tau))
        a.e("s_and_b32 s%d, s%d, 3" % (S_DE + tau, S_T3))
        a.e("s_lshr_b32 s%d, s%d, 2" % (S_DC + tau, S_T3))
        a.e("s_lshl_b32 s%d, s%d, 12" % (S_DC + tau, S_DC + tau))
        a.e("s_lshr_b32 s%d, s%d, 1" % (S_TQ, S_T3))
        a.e("s_mul_i32 s%d, s%d, 9216" % (S_TQ, S_TQ))
        a.e("s_and_b32 s%d, s%d, 1" % (S_T3, S_T3))
        a.e("s_lshl_b32 s%d, s%d, 9" % (S_T3, S_T3))
        a.e("s_add_u32 s%d, s%d, s%d" % (S_QW + tau, S_T3, S_TQ))
    TW, TX = 16, 17
    a.e("s_mul_i32 s%d, s%d, 60" % (S_T3, S_WAVE))
    a.e("v_min_u32 v%d, 59, v0" % V_X1)
    a.e("v_add_u32 v%d, s%d, v%d" % (V_X1, S_T3, V_X1))
    a.e("v_mul_u32_u24 v%d, 0x2ab, v%d" % (V_X2, V_X1))
    a.e("v_lshrrev_b32 v%d, 11, v%d" % (V_X2, V_X2))
    a.e("v_mul_u32_u24 v%d, 3, v%d" % (V_X3, V_X2))
    a.e("v_sub_u32 v%d, v%d, v%d" % (V_X1, V_X1, V_X3))
    a.e("s_mul_i32 s%d, s%d, 160" % (S_T3, S_B))
    a.e("v_add_u32 v%d, s%d, v%d" % (V_X2, S_T3, V_X2))
    a.e("v_mul_u32_u24 v%d, 0x3000, v%d" % (TW, V_X2))
    a.e("v_lshl_add_u32 v%d, v%d, 7, v%d" % (TW, V_X1, TW))
    a.e("s_lshr_b32 s%d, s%d, 1" % (S_T3, S_HI))
    a.e("s_mul_i32 s%d, s%d, 360" % (S_T3, S_T3))
    a.e("s_mul_i32 s%d, s%d, 45" % (S_TQ, S_WAVE))
    a.e("s_add_u32 s%d, s%d, s%d" % (S_T3, S_T3, S_TQ))
    a.e("v_min_u32 v%d, 44, v0" % V_X1)
    a.e("v_add_u32 v%d, s%d, v%d" % (V_X1, S_T3, V_X1))
    a.e("v_lshlrev_b32 v%d, 7, v%d" % (TX, V_X1))
    addr_dma()
    a.e("s_waitcnt lgkmcnt(0)")
    px, pk, pv, pw = S_PTR, S_PTR + 2, S_PTR + 4, S_PTR + 6
    a.e("s_mul_i32 s%d, s%d, 184320" % (S_T3, S_B))
    a.e("s_add_u32 s%d, s%d, s%d" % (S_X, px, S_T3))
    a.e("s_addc_u32 s%d, s%d, 0" % (S_X + 1, px + 1))
    a.e("s_mov_b32 s%d, 184320" % (S_X + 2))
    a.e("s_mov_b32 s%d, 0x20000" % (S_X + 3))
    a.e("s_mul_i32 s%d, s%d, 384" % (S_T3, S_H))
    a.e("s_add_u32 s%d, s%d, s%d" % (S_W, pw, S_T3))
    a.e("s_addc_u32 s%d, s%d, 0" % (S_W + 1, pw + 1))
    a.e("s_sub_u32 s%d, 7864320, s%d" % (S_W + 2, S_T3))
    a.e("s_mov_b32 s%d, 0x20000" % (S_W + 3))
    if opt.get("touch", 1):
        sm = opt.get("smode", 0)
        lt = a.newlabel("LA_tt")
        if sm:
            a.e("s_cmp_eq_u32 s%d, 0" % S_TYPE)
            a.e("s_cbranch_scc0 %s" % lt)
        a.e("buffer_load_dword v%d, v%d, s[%d:%d], 0 offen" % (TX, TX, S_X, S_X + 3))
        a.e("buffer_load_dword v%d, v%d, s[%d:%d], 0 offen" % (18, TW, S_W, S_W + 3))
        if sm == 1:
            a.e("buffer_load_dword v%d, v%d, s[%d:%d], 0 offen offset:384" % (19, TW, S_W, S_W + 3))
        a.label(lt)
    a.e("s_lshl_b32 s%d, s%d, 5" % (S_T3, S_B))
    a.e("s_add_u32 s%d, s%d, s%d" % (S_T3, S_T3, S_H))
    a.e("s_lshl_b32 s%d, s%d, 8" % (S_TQ, S_P))
    a.e("s_add_u32 s%d, s%d, s%d" % (S_TQ, S_TQ, S_T3))
    a.e("s_mul_i32 s%d, s%d, %d" % (S_TQ, S_TQ, O_TASK))
    a.e("s_add_u32 s%d, s%d, s%d" % (S_O, S_WSP, S_TQ))
    a.e("s_addc_u32 s%d, s%d, 0" % (S_O + 1, S_WSP + 1))
    a.e("s_mov_b32 s%d, %d" % (S_O + 2, O_TASK))
    a.e("s_mov_b32 s%d, 0x20000" % (S_O + 3))
    a.e("s_mul_i32 s%d, s%d, 196608" % (S_T3, S_T3))
    for srd, p in ((S_K, pk), (S_V, pv)):
        a.e("s_add_u32 s%d, s%d, s%d" % (srd, p, S_T3))
        a.e("s_addc_u32 s%d, s%d, 0" % (srd + 1, p + 1))
        a.e("s_mov_b32 s%d, 196608" % (srd + 2))
        a.e("s_mov_b32 s%d, 0x20000" % (srd + 3))
    a.e("s_add_u32 s%d, s%d, %d" % (S_XN, S_X, 4 * 184320))
    a.e("s_addc_u32 s%d, s%d, 0" % (S_XN + 1, S_X + 1))
    a.e("s_mov_b32 s%d, 184320" % (S_XN + 2))
    a.e("s_mov_b32 s%d, 0x20000" % (S_XN + 3))
    lz = a.newlabel("LA_z")
    a.e("s_cmp_lt_u32 s2, 64")
    a.e("s_cbranch_scc0 %s" % lz)
    a.e("s_cmp_eq_u32 s%d, 0" % S_WAVE)
    a.e("s_cbranch_scc0 %s" % lz)
    a.e("s_add_u32 s%d, s%d, 0x3f00000" % (S_WO, S_WSP))
    a.e("s_addc_u32 s%d, s%d, 0" % (S_WO + 1, S_WSP + 1))
    a.e("s_mov_b32 s%d, 8192" % (S_WO + 2))
    a.e("s_mov_b32 s%d, 0x20000" % (S_WO + 3))
    a.e("s_lshl_b32 s%d, s2, 7" % S_T3)
    a.e("v_mov_b32 v%d, 0" % V_TMP)
    a.e("buffer_store_dword v%d, off, s[%d:%d], s%d" % (V_TMP, S_WO, S_WO + 3, S_T3))
    a.label(lz)
    a.e("s_lshr_b32 s%d, s%d, 3" % (S_T3, S_H))
    a.e("s_lshl_b32 s%d, s%d, 5" % (S_T3, S_T3))
    a.e("s_lshr_b32 s%d, s2, 3" % S_TQ)
    a.e("s_add_u32 s%d, s%d, s%d" % (S_T3, S_T3, S_TQ))
    a.e("s_mul_i32 s%d, s%d, 61440" % (S_T3, S_T3))
    a.e("s_add_u32 s%d, s%d, s%d" % (S_WO, S_TM, S_T3))
    a.e("s_addc_u32 s%d, s%d, 0" % (S_WO + 1, S_TM + 1))
    a.e("s_mov_b32 s%d, 61440" % (S_WO + 2))
    a.e("s_mov_b32 s%d, 0x20000" % (S_WO + 3))
    a.e("s_lshl_b32 s%d, s%d, 7" % (S_KX, S_CH))
    a.e("s_mul_i32 s%d, s%d, 0xc0000" % (S_KW, S_CH))
    if dbg:
        a.e("s_lshl_b32 s%d, s2, 3" % S_T3)
        a.e("s_add_u32 s%d, s%d, s%d" % (S_T3, S_T3, S_WAVE))
        a.e("s_lshl_b32 s%d, s%d, 7" % (S_T3, S_T3))
        a.e("s_add_u32 s%d, s%d, 0x4000000" % (S_T3, S_T3))
        a.e("s_add_u32 s%d, s%d, s%d" % (S_DBG, S_WSP, S_T3))
        a.e("s_addc_u32 s%d, s%d, 0" % (S_DBG + 1, S_WSP + 1))
        a.e("s_mov_b32 s%d, 128" % (S_DBG + 2))
        a.e("s_mov_b32 s%d, 0x20000" % (S_DBG + 3))
    for k, (sp, st) in enumerate(((S_PA, S_TA), (S_PB, S_TB))):
        a.e("s_lshl_b32 s%d, s%d, 1" % (S_T3, S_WAVE))
        a.e("s_add_u32 s%d, s%d, %d" % (S_T3, S_T3, k))
        a.e("s_mul_i32 s%d, s%d, 43" % (S_TQ, S_T3))
        a.e("s_lshr_b32 s%d, s%d, 7" % (S_TQ, S_TQ))
        a.e("s_mul_i32 s%d, s%d, 3" % (S_T2, S_TQ))
        a.e("s_sub_u32 s%d, s%d, s%d" % (S_T2, S_T3, S_T2))
        a.e("s_lshl_b32 s%d, s%d, 7" % (S_T2, S_T2))
        a.e("s_add_u32 s%d, s%d, 2" % (st, S_TQ))
        a.e("s_add_u32 s%d, s%d, 6" % (S_TQ, S_TQ))
        a.e("s_and_b32 s%d, s%d, 7" % (S_TQ, S_TQ))
        a.e("s_mul_i32 s%d, s%d, 24576" % (S_TQ, S_TQ))
        a.e("s_add_u32 s%d, s%d, s%d" % (sp, S_TQ, S_T2))
        a.e("s_cmp_ge_u32 s%d, 15" % S_T3)
        a.e("s_cselect_b32 s%d, 0x100000, s%d" % (sp, sp))
    addr_rest()
    dbgv = V_TMP if dbg else None
    NT = " nt" if opt.get("nt", True) else ""

    pairs = [(2 * ub + k, cg) for ub in range(2) for cg in range(3) for k in range(2)]

    def k_issue(p):
        kt, cg = pairs[p]
        ub, half = kt >> 1, kt & 1
        a.e("s_mov_b32 s%d, 0x%x" % (S_T3, ub * 12288 + half * 1536 + cg * 128))
        for hh in range(2):
            a.e("s_add_u32 m0, s%d, 0x%x" % (S_M0K, (p % KR) * 2048 + hh * 1024))
            a.e("s_nop 0")
            if not opt.get("nok"):
                a.e("buffer_load_dwordx4 v%d, s[%d:%d], s%d offen%s lds" % (
                    (V_VK0, V_VK1)[hh], S_K, S_K + 3, S_T3, NT), ("k", p))

    def k_take(p, lim=12):
        kt, cg = pairs[p]
        if not opt.get("nok"):
            a.e("s_waitcnt vmcnt(%d)" % a.vmn(("k", p)))
        a.e("ds_read_b128 %s, v%d offset:%d" % (vr(Kf(kt, 2 * cg), 4), V_KR0, (p % KR) * 2048))
        a.e("ds_read_b128 %s, v%d offset:%d" % (vr(Kf(kt, 2 * cg + 1), 4), V_KR1, (p % KR) * 2048))
        a.e("s_waitcnt lgkmcnt(0)")
        if p + KR < lim:
            k_issue(p + KR)

    def dma_chunk(grp, slot, tag):
        L = []
        if grp == 1:
            for n in range(5):
                g = ["s_add_u32 m0, s%d, 0x%x" % (S_M0X, XLOC[slot] + 1024 * n),
                     "s_add_u32 s%d, s%d, 0x%x" % (S_T3, S_KX, n * 10240)]
                if n == 4:
                    g.append("s_mov_b32 exec_hi, 0")
                if not opt.get("nox"):
                    g.append(("buffer_load_dwordx4 v%d, s[%d:%d], s%d offen lds" % (
                        (V_VX0, V_VX1)[n & 1], S_X, S_X + 3, S_T3), tag))
                if n == 4:
                    g.append("s_mov_b32 exec_hi, -1")
                L.append(g)
            L.append(["s_add_u32 s%d, s%d, 128" % (S_KX, S_KX),
                      "s_cmp_ge_u32 s%d, 1280" % S_KX,
                      "s_cselect_b32 s%d, 0, s%d" % (S_KX, S_KX)])
        else:
            for kh in range(2):
                for cg in range(3):
                    g = ["s_add_u32 m0, s%d, 0x%x" % (S_M0W, WLOC[slot] + kh * 12288 + 4096 * cg - 128 * cg),
                         "s_nop 0"]
                    if not opt.get("now"):
                        g.append(("buffer_load_dwordx4 v%d, s[%d:%d], s%d offen offset:%d lds" % (
                            V_VW, S_W, S_W + 3, S_KW, 128 * cg), tag))
                    L.append(g)
                L.append(["s_add_u32 s%d, s%d, 0x60000" % (S_KW, S_KW)])
            L.append(["s_cmp_ge_u32 s%d, 0x780000" % S_KW,
                      "s_cselect_b32 s%d, 0, s%d" % (S_KW, S_KW)])
        return L

    border = [4, 5, 6, 7, 0, 1, 2, 3]

    def vgoff(tile):
        return border[tile & 7] * 24576 + (tile >> 3) * 12288

    def v_dma_const(tile, slot):
        goff = vgoff(tile)
        L = []
        if opt.get("nov"):
            return L
        for cg in range(3):
            L.append(["s_add_u32 m0, s%d, 0x%x" % (S_M0W, VBASE + slot * VSLOT + 4096 * cg - 128 * cg),
                      "s_mov_b32 s%d, 0x%x" % (S_T3, goff),
                      ("buffer_load_dwordx4 v%d, s[%d:%d], s%d offen offset:%d%s lds" % (
                          V_VOFFV, S_V, S_V + 3, S_T3, 128 * cg, NT), ("v", tile))])
        return L

    def p1_reads(tiles, step):
        c, kh = step >> 1, step & 1
        fset = step & 1
        sl = c % NCH
        tb, to = (V_TRA, WLOC[sl] - WLOC[0]) if sl < 2 else (V_TRB, 0)
        xb, xo = (V_XA, 0) if sl == 0 else (V_XB, XLOC[sl] - XLOC[1])
        L = []
        for tau in range(3):
            d = V_A1 + fset * 12 + tau * 4
            L.append(["ds_read_b64_tr_b16 %s, v%d offset:%d" % (vr(d, 2), tb + tau, to + kh * 12288)])
            L.append(["ds_read_b64_tr_b16 %s, v%d offset:%d" % (vr(d + 2, 2), tb + tau, to + kh * 12288 + 512)])
        for j, t in enumerate(tiles):
            d = V_B1 + fset * 20 + j * 4
            L.append(["ds_read_b128 %s, v%d offset:%d" % (vr(d, 4), xb + kh, xo + t * 2048)])
        return L

    def p1_mfmas(tiles, fset, first=False):
        M = []
        for j, t in enumerate(tiles):
            for tau in range(3):
                acc = V_ACC1 + (j * 3 + tau) * 4
                M.append("v_mfma_f32_16x16x32_bf16 %s, %s, %s, %s" % (
                    vr(acc, 4), vr(V_A1 + fset * 12 + tau * 4, 4), vr(V_B1 + fset * 20 + j * 4, 4),
                    "0" if first else vr(acc, 4)))
        return M

    def vmwait(tag, extra=""):
        if tag in a.vm:
            a.e("s_waitcnt vmcnt(%d)%s" % (a.vmn(tag), extra))
        elif extra:
            a.e("s_waitcnt" + extra)

    stamp(a, 0, dbgv)
    if dbg:
        a.e("s_getreg_b32 s%d, hwreg(HW_REG_XCC_ID)" % S_T3)
        a.e("v_mov_b32 v%d, s%d" % (V_TMP, S_T3))
        a.lines.append("    buffer_store_dword v%d, off, s[%d:%d], 0 offset:60" % (V_TMP, S_DBG, S_DBG + 3))
        a.e("s_getreg_b32 s%d, hwreg(HW_REG_HW_ID)" % S_T3)
        a.e("s_nop 1")
        a.e("v_mov_b32 v%d, s%d" % (V_TMP, S_T3))
        a.lines.append("    buffer_store_dword v%d, off, s[%d:%d], 0 offset:56" % (V_TMP, S_DBG, S_DBG + 3))
        a.e("s_memrealtime s[%d:%d]" % (S_TM, S_TM + 1))
        a.e("s_waitcnt lgkmcnt(0)")
        a.e("v_mov_b32 v%d, s%d" % (V_TMP, S_TM))
        a.lines.append("    buffer_store_dword v%d, off, s[%d:%d], 0 offset:52" % (V_TMP, S_DBG, S_DBG + 3))
    S_VEM, S_VEO = S_VR, S_PR
    a.e("s_mul_i32 s%d, s%d, %d" % (S_VEM, S_GRP, VSLOT))
    a.e("s_add_u32 s%d, s%d, s%d" % (S_VEM, S_VEM, S_M0W))
    a.e("s_mul_i32 s%d, s%d, %d" % (S_VEO, S_GRP, vgoff(1) - vgoff(0)))
    a.e("s_add_u32 s%d, s%d, 0x%x" % (S_VEO, S_VEO, vgoff(0)))

    def v_early():
        for cg in range(3):
            a.e("s_add_u32 m0, s%d, 0x%x" % (S_VEM, VBASE + 4096 * cg - 128 * cg))
            a.e("s_nop 0")
            if not opt.get("nov"):
                a.e("buffer_load_dwordx4 v%d, s[%d:%d], s%d offen offset:%d%s lds" % (
                    V_VOFFV, S_V, S_V + 3, S_VEO, 128 * cg, NT), "ve")

    def o_stores(wait):
        ONT = ("", " nt", " sc1", " sc0 sc1")[opt.get("ont", 3)]
        for k in range(7):
            if wait:
                a.e("s_waitcnt lgkmcnt(%d)" % (6 - k))
            a.e("s_mov_b32 s%d, %d" % (S_T3, k * 1024))
            a.e("buffer_store_dwordx4 %s, v%d, s[%d:%d], s%d offen%s" % (vr(160 + 4 * k, 4), V_YW, S_O, S_O + 3, S_T3, ONT))

    def v_panel(k):
        if k == 0:
            a.e("s_mul_i32 s%d, s%d, 3072" % (S_T3, S_WS))
            a.e("v_subrev_u32 v%d, s%d, v%d" % (V_VK0, S_T3, V_VOFFV))
            a.e("s_and_b32 s%d, s%d, 1" % (S_T3, S_WS))
            a.e("s_lshl_b32 s%d, s%d, 6" % (S_T3, S_T3))
            a.e("v_xor_b32 v%d, s%d, v%d" % (V_VK0, S_T3, V_VK0))
            a.e("v_xor_b32 v%d, 64, v%d" % (V_VK1, V_VK0))
        for i in range(4):
            a.e("s_add_u32 m0, s%d, 0x%x" % (S_M0K, k * 4096 + i * 1024))
            a.e("s_add_u32 s%d, s%d, %d" % (S_T3, (S_PA, S_PB)[k], i * 3072))
            if not opt.get("nov"):
                a.e("buffer_load_dwordx4 v%d, s[%d:%d], s%d offen%s lds" % (
                    (V_VK0, V_VK1)[i & 1], S_V, S_V + 3, S_T3, NT), "p%d" % k)

    a.e("s_cmp_eq_u32 s%d, 0" % S_TYPE)
    a.e("s_cbranch_scc1 LA_p1")
    a.e("s_cmp_eq_u32 s%d, 1" % S_TYPE)
    a.e("s_cbranch_scc1 LA_kh")
    a.vm = []
    for p in range(KR):
        k_issue(p)
    for p in range(12):
        k_take(p)
    a.e("s_branch LA_kd")
    a.label("LA_kh")
    a.vm = []
    for p in range(KR):
        k_issue(p)
    for p in range(6):
        k_take(p, 6)
    a.label("LA_kd")
    a.e("s_barrier")
    stamp(a, 1, dbgv)
    a.label("LA_p1")
    a.e("s_cmp_eq_u32 s%d, 0" % S_GRP)
    a.e("s_cbranch_scc0 LA_p1_g1")
    for grp in (0, 1):
        a.vm = []
        tiles = [5, 6, 7, 8] if grp == 0 else [0, 1, 2, 3, 4]
        if grp == 1:
            a.label("LA_p1_g1")
        for c in range(2):
            a.grp(dma_chunk(grp, c, c))
        vmwait(0)
        a.label("LA_p1_re%d" % grp)
        a.e("s_barrier")
        a.grp(p1_reads(tiles, 0))
        pend = []
        for step in range(20):
            c = step >> 1
            oth = []
            if step & 1:
                if c + 1 < 10:
                    vmwait(c + 1, " lgkmcnt(0)")
                else:
                    a.e("s_waitcnt lgkmcnt(0)")
                a.e("s_barrier")
                if opt.get("dbg2"):
                    a.e("s_memtime s[%d:%d]" % (66 + 2 * c, 67 + 2 * c))
            else:
                a.e("s_waitcnt lgkmcnt(0)")
            if step + 1 < 20:
                oth = p1_reads(tiles, step + 1)
            dm = []
            if step == 0:
                dm = dma_chunk(grp, 2, 2)
            if (step & 1) and c + 3 < 10:
                full = dma_chunk(grp, c % NCH, c + 3)
                hsplit = 4 if grp == 0 else 3
                dm, pend = full[:hsplit], full[hsplit:]
            elif pend:
                dm, pend = pend, []
            mf = p1_mfmas(tiles, step & 1, step == 0)
            if opt.get("nomf"):
                mf = ["s_nop 0"] * len(mf)
            if opt.get("nord"):
                oth = []
            nm = len(mf)
            ri = di = 0
            for i, m in enumerate(mf):
                a.e(m)
                k = -(-(len(oth) - ri) // (nm - i))
                for _ in range(k):
                    a.g1(oth[ri])
                    ri += 1
                if di < len(dm) and (i + 1) * len(dm) >= (di + 1) * nm - nm // 2:
                    a.g1(dm[di])
                    di += 1
            while di < len(dm):
                a.g1(dm[di])
                di += 1
        if opt.get("touch", 2) == 1:
            l = a.newlabel("LA_tx")
            a.e("s_cmp_eq_u32 s%d, 0" % S_TASK)
            a.e("s_cbranch_scc0 %s" % l)
            a.e("s_lshr_b32 s%d, s%d, 1" % (S_T3, S_HI))
            a.e("s_mul_i32 s%d, s%d, 360" % (S_T3, S_T3))
            a.e("s_mul_i32 s%d, s%d, 45" % (S_TQ, S_WAVE))
            a.e("s_add_u32 s%d, s%d, s%d" % (S_T3, S_T3, S_TQ))
            a.e("v_min_u32 v%d, 44, v0" % V_X1)
            a.e("v_add_u32 v%d, s%d, v%d" % (V_X1, S_T3, V_X1))
            a.e("v_lshlrev_b32 v%d, 7, v%d" % (V_X1, V_X1))
            a.e("buffer_load_dword v%d, v%d, s[%d:%d], 0 offen" % (V_TMP, V_X1, S_XN, S_XN + 3))
            a.label(l)
        if opt.get("late", 0):
            l = a.newlabel("LA_lo")
            a.e("s_cmp_eq_u32 s%d, 0" % S_TASK)
            a.e("s_cbranch_scc1 %s" % l)
            o_stores(False)
            a.e("s_add_u32 s%d, s%d, %d" % (S_O, S_O, 128 * O_TASK))
            a.e("s_addc_u32 s%d, s%d, 0" % (S_O + 1, S_O + 1))
            a.label(l)
        l, l1 = a.newlabel("LA_ks"), a.newlabel("LA_ks")
        a.e("s_cmp_eq_u32 s%d, 1" % S_TYPE)
        a.e("s_cbranch_scc0 %s" % l1)
        for p in range(6, 6 + KR):
            k_issue(p)
        a.label(l1)
        a.e("s_cmp_eq_u32 s%d, 0" % S_TYPE)
        a.e("s_cbranch_scc0 %s" % l)
        a.vm = []
        for p in range(KR):
            k_issue(p)
        a.label(l)
        a.e("s_nop 7")
        for j, t in enumerate(tiles):
            for tau in range(3):
                acc = V_ACC1 + (j * 3 + tau) * 4
                a.e("v_cvt_pk_bf16_f32 v%d, v%d, v%d" % (acc, acc, acc + 1))
                a.e("v_cvt_pk_bf16_f32 v%d, v%d, v%d" % (acc + 1, acc + 2, acc + 3))
                a.e("ds_write_b64 v%d, %s offset:%d" % (V_QW + tau, vr(acc, 2), t * 1024))
        a.e("s_waitcnt lgkmcnt(0)")
        if grp == 0:
            a.e("s_branch LA_p1_done")
    a.label("LA_p1_done")
    stamp(a, 2, dbgv)
    if opt.get("dbg2"):
        for c in range(10):
            a.e("v_mov_b32 v%d, s%d" % (V_TMP, 66 + 2 * c))
            a.lines.append("    buffer_store_dword v%d, off, s[%d:%d], 0 offset:%d" % (V_TMP, S_DBG, S_DBG + 3, 64 + 4 * c))
    a.label("LA_p2_re")
    a.e("s_barrier")
    stamp(a, 3, dbgv)
    vm_save = list(a.vm)
    a.e("s_cmp_eq_u32 s%d, 2" % S_TYPE)
    a.e("s_cbranch_scc0 LA_p2_go")
    v_early()
    v_panel(0)
    a.label("LA_p2_go")
    a.vm = vm_save
    seq = [(ub, s, t) for ub in range(2) for s in range(6) for t in range(9)]
    QB = ([88, 92, 96, 100, 104, 108], [188, 192, 196, 200, 4, 8])
    PD = 4

    def qbuf(i):
        return QB[seq[i][0]][i % 6]

    def qread(i):
        ub, s, t = seq[i]
        return "ds_read_b128 %s, v%d offset:%d" % (vr(qbuf(i), 4), V_L16, (s * 9 + t) * 1024)

    def blk(ub, t):
        return [S(kt, t) + r for kt in (2 * ub, 2 * ub + 1) for r in range(4)]

    def exp_stream(ub, t, tmp, first):
        v = blk(ub, t)
        L = []
        for x in v:
            L.append("v_fma_f32 v%d, v%d, s%d, -v%d" % (x, x, S_C, V_MC + t))
        for x in v:
            L.append("v_exp_f32 v%d, v%d" % (x, x))
        return L

    va = []
    for t in range(9):
        v = blk(0, t)
        m = V_MC + t
        va.append("v_max3_f32 v%d, v%d, v%d, v%d" % (m, v[0], v[1], v[2]))
        va.append("v_max3_f32 v%d, v%d, v%d, v%d" % (V_RT, v[3], v[4], v[5]))
        va.append("v_max3_f32 v%d, v%d, v%d, v%d" % (m, m, v[6], v[7]))
        va.append("v_max_f32 v%d, v%d, v%d" % (m, m, V_RT))
        va.append("v_mul_f32 v%d, s%d, v%d" % (m, S_C, m))
        va += exp_stream(0, t, V_RT, True)
    vai = 0
    for i in range(PD):
        a.e(qread(i))
    n = len(seq)
    PP = opt.get("pp", 1)
    nva1 = opt.get("nva1", 8)
    per_tile = len(va) // 9
    if PP:
        a.e("s_setprio 2")
    for i, (ub, s, t) in enumerate(seq):
        if PP and i == 54:
            a.e("s_setprio 0")
            a.e("s_nop 4")
            for ins in va[:nva1 * per_tile]:
                a.e(ins)
            vai = nva1 * per_tile
            a.e("s_setprio 2")
        if t == 0 and s % 2 == 0 and opt.get("dbg4"):
            a.e("s_memtime s[%d:%d]" % (66 + 4 * (ub * 3 + s // 2), 67 + 4 * (ub * 3 + s // 2)))
        if t == 0 and s % 2 == 0:
            l = a.newlabel("LA_kt")
            a.e("s_cmp_le_u32 s%d, %d" % (S_TYPE, ub))
            a.e("s_cbranch_scc0 %s" % l)
            p0 = ub * 6 + s
            k_take(p0)
            k_take(p0 + 1)
            if p0 == 6:
                v_early()
            if p0 == 10:
                v_panel(0)
            a.label(l)
            if opt.get("dbg4"):
                a.e("s_memtime s[%d:%d]" % (68 + 4 * (ub * 3 + s // 2), 69 + 4 * (ub * 3 + s // 2)))
                a.e("s_waitcnt lgkmcnt(0)")
        if i + PD < n:
            a.e(qread(i + PD))
            a.e("s_waitcnt lgkmcnt(%d)" % PD)
        else:
            a.e("s_waitcnt lgkmcnt(%d)" % (n - 1 - i))
        for k in range(2):
            kt = 2 * ub + k
            cc = "0" if s == 0 else vr(S(kt, t), 4)
            a.e("v_mfma_f32_16x16x32_bf16 %s, %s, %s, %s" % (
                vr(S(kt, t), 4), vr(Kf(kt, s), 4), vr(qbuf(i), 4), cc))
            if not PP and ub == 1 and i >= 54 + 3:
                rem = 2 * (n - i) - k
                cnt = -(-(len(va) - vai) // rem)
                for _ in range(cnt):
                    a.e(va[vai])
                    vai += 1
    if PP:
        a.e("s_setprio 0")
        for ins in va[vai:]:
            a.e(ins)
        vai = len(va)
    assert vai == len(va)
    v_panel(1)
    stamp(a, 4, dbgv)
    if opt.get("dbg4"):
        for c in range(12):
            a.e("v_mov_b32 v%d, s%d" % (V_TMP, 66 + 2 * c))
            a.lines.append("    buffer_store_dword v%d, off, s[%d:%d], 0 offset:%d" % (V_TMP, S_DBG, S_DBG + 3, 64 + 4 * c))
    MB = V_RT + 60
    a.e("v_and_b32 v%d, 15, v0" % V_Y)
    a.e("v_mul_u32_u24 v%d, 48, v%d" % (V_Y, V_Y))
    a.e("s_lshl_b32 s%d, s%d, 2" % (S_T3, S_WAVE))
    a.e("v_add_u32 v%d, s%d, v%d" % (V_YW, S_T3, V_Y))
    a.e("s_nop 4")
    for stp in range(5):
        for t in range(9):
            v = blk(1, t)
            m = MB + t
            if stp == 0:
                a.e("v_max3_f32 v%d, v%d, v%d, v%d" % (m, v[0], v[1], v[2]))
            elif stp < 3:
                a.e("v_max3_f32 v%d, v%d, v%d, v%d" % (m, m, v[1 + 2 * stp], v[2 + 2 * stp]))
            elif stp == 3:
                a.e("v_max_f32 v%d, v%d, v%d" % (m, m, v[7]))
            else:
                a.e("v_mul_f32 v%d, s%d, v%d" % (m, S_C, m))
    for t in range(9):
        a.e("v_max_f32 v%d, v%d, v%d" % (MB + t, MB + t, V_MC + t))
    xlane_reduce(a, [MB + t for t in range(9)], [V_RT + t for t in range(9)], "v_max_f32")
    a.e("s_mov_b64 exec, 0xffff")
    for t in range(9):
        a.e("ds_write_b32 v%d, v%d offset:%d" % (V_YW, MB + t, MAXB + t * 768))
    a.e("s_mov_b64 exec, -1")
    a.e("s_waitcnt lgkmcnt(0)")
    a.e("s_barrier")
    RT = V_RT
    for t in range(9):
        a.e("ds_read_b128 %s, v%d offset:%d" % (vr(RT + t * 8, 4), V_Y, MAXB + t * 768))
        a.e("ds_read_b128 %s, v%d offset:%d" % (vr(RT + t * 8 + 4, 4), V_Y, MAXB + t * 768 + 16))
    tr_addr(V_TVL, VBASE, V_PB1, V_PW)
    a.e("v_add_u32 v%d, 0x%x, v%d" % (V_PB1, 4 * PSLOT, V_L16))
    a.e("s_mul_i32 s%d, s%d, %d" % (S_T3, S_WAVE, PSLOT))
    a.e("v_add_u32 v%d, s%d, v%d" % (V_PW, S_T3, V_L16))
    a.e("s_waitcnt lgkmcnt(0)")
    a.e("s_barrier")
    for t in range(9):
        b = RT + t * 8
        a.e("v_max3_f32 v%d, v%d, v%d, v%d" % (b, b, b + 1, b + 2))
        a.e("v_max3_f32 v%d, v%d, v%d, v%d" % (b + 3, b + 3, b + 4, b + 5))
        a.e("v_max3_f32 v%d, v%d, v%d, v%d" % (b, b, b + 6, b + 7))
    for t in range(9):
        b = RT + t * 8
        a.e("v_max_f32 v%d, v%d, v%d" % (b, b, b + 3))
    for t in range(9):
        b = RT + t * 8
        a.e("v_sub_f32 v%d, v%d, v%d" % (b + 2, V_MC + t, b))
    for t in range(9):
        b = RT + t * 8
        a.e("v_exp_f32 v%d, v%d" % (b + 2, b + 2))
        a.e("v_mov_b32 v%d, v%d" % (V_MC + t, b))
    for k in range(4):
        a.e("v_mov_b32 v%d, 0x3f803f80" % (V_ONE + k))
    for t in range(9):
        b = RT + t * 8
        v = blk(0, t)
        for k in range(4):
            a.e("v_pk_mul_f32 %s, %s, %s op_sel_hi:[1,0]" % (vr(v[2 * k], 2), vr(v[2 * k], 2), vr(b + 2, 2)))
        d = S(0, t)
        for k in range(4):
            a.e("v_cvt_pk_bf16_f32 v%d, v%d, v%d" % (d + k, v[2 * k], v[2 * k + 1]))
        a.e("ds_write_b128 v%d, %s offset:%d" % (V_PW, vr(d, 4), t * 1024))
        if t >= 1:
            a.e("v_mfma_f32_16x16x32_bf16 %s, %s, %s, 0" % (vr(S(1, t - 1), 4), vr(V_ONE, 4), vr(S(0, t - 1), 4)))
        if t >= 2:
            a.e("v_mov_b32 v%d, v%d" % (V_SUM + t - 2, S(1, t - 2)))
    a.e("s_nop 0")
    a.e("v_mfma_f32_16x16x32_bf16 %s, %s, %s, 0" % (vr(S(1, 8), 4), vr(V_ONE, 4), vr(S(0, 8), 4)))
    a.e("s_nop 7")
    a.e("v_mov_b32 v%d, v%d" % (V_SUM + 7, S(1, 7)))
    a.e("v_mov_b32 v%d, v%d" % (V_SUM + 8, S(1, 8)))
    for tau in range(3):
        a.e("v_add_u32 v%d, 0x%x, v%d" % (V_TVH + tau, 4 * VSLOT, V_TVL + tau))
    stamp(a, 5, dbgv)
    a.e("s_cmp_eq_u32 s%d, 0" % S_GRP)
    a.e("s_cbranch_scc0 LA_p3_g1")

    def p3_reads(tiles, step):
        fset = step & 1
        vs = step % NV
        tb, vo = (V_TVL, vs * VSLOT) if vs < 4 else (V_TVH, (vs - 4) * VSLOT)
        ps = border[step & 7]
        pb, po = (V_PB0, ps * PSLOT) if ps < 4 else (V_PB1, (ps - 4) * PSLOT)
        L = []
        for tau in range(3):
            d = V_A3[fset] + tau * 4
            L.append(["ds_read_b64_tr_b16 %s, v%d offset:%d" % (vr(d, 2), tb + tau, vo)])
            L.append(["ds_read_b64_tr_b16 %s, v%d offset:%d" % (vr(d + 2, 2), tb + tau, vo + 512)])
        for j, t in enumerate(tiles):
            d = V_B3[fset] + j * 4
            L.append(["ds_read_b128 %s, v%d offset:%d" % (vr(d, 4), pb, po + t * 1024)])
        return L

    def p3_mfmas(tiles, step):
        fset = step & 1
        M = []
        for j, t in enumerate(tiles):
            for tau in range(3):
                acc = V_ACC3 + (j * 3 + tau) * 4
                M.append("v_mfma_f32_16x16x32_bf16 %s, %s, %s, %s" % (
                    vr(acc, 4), vr(V_A3[fset] + tau * 4, 4), vr(V_B3[fset] + j * 4, 4),
                    "0" if step == 0 else vr(acc, 4)))
        return M

    SUMB = 0
    SUMLOC = 147456
    OST = 2 * CH
    for grp in (0, 1):
        tiles = [0, 1, 2, 3, 4] if grp == 0 else [5, 6, 7, 8]
        vb = []
        for t in range(9):
            st = exp_stream(1, t, V_ET, False)
            v = blk(1, t)
            d = S(2, t)
            if t >= 1:
                st.insert(4, "v_mfma_f32_16x16x32_bf16 %s, %s, %s, 0" % (vr(S(3, t - 1), 4), vr(V_ONE, 4), vr(S(2, t - 1), 4)))
            if t >= 2:
                st.insert(2, "v_add_f32 v%d, v%d, v%d" % (V_SUM + t - 2, V_SUM + t - 2, S(3, t - 2)))
            vb += st
            for k in range(4):
                vb.append("v_cvt_pk_bf16_f32 v%d, v%d, v%d" % (d + k, v[2 * k], v[2 * k + 1]))
        c0b, c0e = opt.get("c0b", 0), opt.get("c0e", 9)
        cbeg, cend = (c0b, c0e) if grp == 0 else (0, 6)
        if grp == 0:
            wsteps = {7: [0, 1], 8: [2, 3, 4], 9: [5, 6], 10: [7, 8]}
        else:
            wsteps = {3: [0, 1], 4: [2, 3, 4], 5: [5, 6], 6: [7, 8]}
        xl = ["v_mfma_f32_16x16x32_bf16 %s, %s, %s, 0" % (vr(S(3, 8), 4), vr(V_ONE, 4), vr(S(2, 8), 4)),
              "v_add_f32 v%d, v%d, v%d" % (V_SUM + 7, V_SUM + 7, S(3, 7))]
        xl2 = ["v_add_f32 v%d, v%d, v%d" % (V_SUM + 8, V_SUM + 8, S(3, 8))]
        xstep = cend
        pubstep = 13
        if grp == 1:
            a.label("LA_p3_g1")
        a.vm = ["ve"] * 3 + ["p0"] * 4 + ["p1"] * 4
        if opt.get("nov"):
            a.vm = []
        vmwait("ve", " lgkmcnt(0)")
        a.e("s_barrier")
        a.grp(p3_reads(tiles, 0))
        vbi = 0
        for step in range(16):
            if 1 <= step <= 5 and not opt.get("nov"):
                la, lb = a.newlabel("LA_wa"), a.newlabel("LA_wb")
                a.e("s_cmp_le_u32 s%d, %d" % (S_TA, step + 1))
                a.e("s_cbranch_scc0 %s" % lb)
                a.e("s_waitcnt vmcnt(%d)" % a.vmn("p0"))
                a.e("s_cmp_le_u32 s%d, %d" % (S_TB, step + 1))
                a.e("s_cbranch_scc0 %s" % lb)
                a.e("s_waitcnt vmcnt(%d)" % a.vmn("p1"))
                a.label(lb)
                a.e("s_waitcnt lgkmcnt(0)")
            elif grp == 1 and 6 <= step < 15:
                vmwait(("v", step + 1), " lgkmcnt(0)")
            else:
                a.e("s_waitcnt lgkmcnt(0)")
            a.e("s_barrier")
            if opt.get("dbg3") and step < 15:
                a.e("s_memtime s[%d:%d]" % (66 + 2 * step, 67 + 2 * step))
            oth = p3_reads(tiles, step + 1) if step < 15 else []
            if grp == 1 and step + NV < 16:
                oth = oth + v_dma_const(step + NV, step % NV)
            valu = []
            if cbeg <= step < cend:
                k = -(-(len(vb) - vbi) // (cend - step))
                valu = vb[vbi:vbi + k]
                vbi += k
            if step == xstep:
                valu = xl
            if step == xstep + 1:
                valu = xl2
            if step == 12:
                valu = valu + ["v_add_u32 v%d, 0x%x, v%d" % (V_Y, SUMLOC, V_Y), "v_add_u32 v%d, 0x%x, v%d" % (V_YW, SUMLOC, V_YW)]
            if step == 14:
                tmpa = Asm()
                sa = a
                globals()["_a"] = None
                lines0 = len(a.lines)
                addr_dma(88, 89, 90, 91)
                valu = valu + [l.strip() for l in a.lines[lines0:]]
                del a.lines[lines0:]
            if step == 15:
                lnx = a.newlabel("LA_nx")
                a.e("s_cmp_eq_u32 s%d, 0" % S_TASK)
                a.e("s_cbranch_scc0 %s" % lnx)
                a.e("s_mov_b32 s%d, s%d" % (S_X, S_XN))
                a.e("s_mov_b32 s%d, s%d" % (S_X + 1, S_XN + 1))
                a.vm = []
                a.grp(dma_chunk(grp, 0, 0))
                a.label(lnx)
            tail = []
            if step in wsteps:
                for t in wsteps[step]:
                    tail.append(["ds_write_b128 v%d, %s offset:%d" % (V_PW, vr(S(2, t), 4), t * 1024)])
            if step == pubstep:
                tail.append(["s_mov_b64 exec, 0xffff"] +
                            ["ds_write_b32 v%d, v%d offset:%d" % (V_YW, V_SUM + t, SUMB + t * 768) for t in range(9)] +
                            ["s_mov_b64 exec, -1"])
            mf = p3_mfmas(tiles, step)
            if step == opt.get("tstep", 9) and opt.get("touch", 2) == 2:
                T1, TD = 46, 87
                l2, l3 = a.newlabel("LA_t2"), a.newlabel("LA_t3")
                a.e("s_cmp_eq_u32 s%d, 0" % S_TASK)
                a.e("s_cbranch_scc0 %s" % l2)
                a.e("s_lshr_b32 s%d, s%d, 1" % (S_T3, S_HI))
                a.e("s_mul_i32 s%d, s%d, 360" % (S_T3, S_T3))
                a.e("s_mul_i32 s%d, s%d, 45" % (S_TQ, S_WAVE))
                a.e("s_add_u32 s%d, s%d, s%d" % (S_T3, S_T3, S_TQ))
                a.e("v_min_u32 v%d, 44, v0" % T1)
                a.e("v_add_u32 v%d, s%d, v%d" % (T1, S_T3, T1))
                a.e("v_lshlrev_b32 v%d, 7, v%d" % (T1, T1))
                a.e("buffer_load_dword v%d, v%d, s[%d:%d], 0 offen" % (TD, T1, S_XN, S_XN + 3), "t")
                a.e("s_branch %s" % l3)
                a.label(l2)
                a.e("s_mul_i32 s%d, s%d, 7680" % (S_T3, S_WAVE))
                a.e("v_min_u32 v%d, 59, v0" % T1)
                a.e("v_lshlrev_b32 v%d, 7, v%d" % (T1, T1))
                a.lines.append("    buffer_load_dword v%d, v%d, s[%d:%d], s%d offen" % (TD, T1, S_WO, S_WO + 3, S_T3))
                a.label(l3)

            def cost(ins):
                return 2 if ins.startswith("v_exp") else 1

            def take(lst, slots):
                k = c = 0
                while k < len(lst) and c + cost(lst[k]) <= slots:
                    c += cost(lst[k])
                    k += 1
                return lst[:k], lst[k:]

            def mixed(mf, mem, valu):
                nm = len(mf)
                mi = 0
                for i, m in enumerate(mf):
                    a.e(m)
                    k = -(-(len(mem) - mi) // (nm - i))
                    for _ in range(k):
                        a.g1(mem[mi])
                        mi += 1
                    now, valu = take(valu, 2)
                    for ins in now:
                        a.e(ins)
                return valu
            rd = [g for g in oth if g[0].startswith("ds_read")]
            dm = [g for g in oth if not g[0].startswith("ds_read")]
            mem = rd + tail + dm
            nm = len(mf)
            span = max(1, int(nm * opt.get("span", 70) / 100))
            mi = vi = 0
            for i, m in enumerate(mf):
                a.e(m)
                k = -(-(len(mem) - mi) // max(span - i, 1))
                for _ in range(k):
                    a.g1(mem[mi])
                    mi += 1
                k = -(-(len(valu) - vi) // (nm - i))
                for _ in range(k):
                    a.e(valu[vi])
                    vi += 1
        assert vbi == len(vb)
        stamp(a, 6, dbgv)
        if opt.get("dbg3"):
            for c in range(15):
                a.e("v_mov_b32 v%d, s%d" % (V_TMP, 66 + 2 * c))
                a.lines.append("    buffer_store_dword v%d, off, s[%d:%d], 0 offset:%d" % (V_TMP, S_DBG, S_DBG + 3, 64 + 4 * c))
        lnx = a.newlabel("LA_nx")
        a.e("s_cmp_eq_u32 s%d, 0" % S_TASK)
        a.e("s_cbranch_scc0 %s" % lnx)
        a.grp(dma_chunk(grp, 1, 1))
        a.label(lnx)
        ST = 88
        for j, t in enumerate(tiles):
            a.e("ds_read_b128 %s, v%d offset:%d" % (vr(ST + j * 8, 4), V_Y, SUMB + t * 768))
            a.e("ds_read_b128 %s, v%d offset:%d" % (vr(ST + j * 8 + 4, 4), V_Y, SUMB + t * 768 + 16))
        qw_addr(V_QW3)
        for tau in range(3):
            a.e("v_add_u32 v%d, 0x%x, v%d" % (V_QW3 + tau, OST, V_QW3 + tau))
        a.e("s_waitcnt lgkmcnt(0)")
        for j, t in enumerate(tiles):
            b = ST + j * 8
            for k in range(4):
                a.e("v_add_f32 v%d, v%d, v%d" % (b + k, b + k, b + k + 4))
        for j, t in enumerate(tiles):
            b = ST + j * 8
            a.e("v_add_f32 v%d, v%d, v%d" % (b, b, b + 1))
            a.e("v_add_f32 v%d, v%d, v%d" % (b + 2, b + 2, b + 3))
        for j, t in enumerate(tiles):
            b = ST + j * 8
            a.e("v_add_f32 v%d, v%d, v%d" % (b, b, b + 2))
        for j, t in enumerate(tiles):
            a.e("v_rcp_f32 v%d, v%d" % (ST + j * 8, ST + j * 8))
        a.e("s_nop 0")
        for j, t in enumerate(tiles):
            for tau in range(3):
                acc = V_ACC3 + (j * 3 + tau) * 4
                for r in range(2):
                    a.e("v_pk_mul_f32 %s, %s, %s op_sel_hi:[1,0]" % (
                        vr(acc + 2 * r, 2), vr(acc + 2 * r, 2), vr(ST + j * 8, 2)))
                a.e("v_cvt_pk_bf16_f32 v%d, v%d, v%d" % (acc, acc, acc + 1))
                a.e("v_cvt_pk_bf16_f32 v%d, v%d, v%d" % (acc + 1, acc + 2, acc + 3))
                a.e("ds_write_b64 v%d, %s offset:%d" % (V_QW3 + tau, vr(acc, 2), t * 1024))
        a.e("s_mul_i32 s%d, s%d, 7168" % (S_T3, S_WAVE))
        a.e("v_add_u32 v%d, s%d, v%d" % (V_YW, S_T3, V_L16))
        a.e("v_add_u32 v%d, 0x%x, v%d" % (V_Y, OST, V_YW))
        a.e("s_waitcnt lgkmcnt(0)")
        a.e("s_barrier")
        for k in range(7):
            a.e("ds_read_b128 %s, v%d offset:%d" % (vr(160 + 4 * k, 4), V_Y, k * 1024))
        pg = grp
        ls = a.newlabel("LA_st")
        if opt.get("late", 0):
            a.e("s_cmp_eq_u32 s%d, 0" % S_TASK)
            a.e("s_cbranch_scc1 %s" % ls)
        sv = list(a.vm)
        o_stores(True)
        if opt.get("late", 0):
            a.vm = sv
        a.label(ls)
        stamp(a, 7, dbgv)
        if dbg:
            a.e("s_memrealtime s[%d:%d]" % (S_TM, S_TM + 1))
            a.e("s_waitcnt lgkmcnt(0)")
            a.e("v_mov_b32 v%d, s%d" % (V_TMP, S_TM))
            a.lines.append("    buffer_store_dword v%d, off, s[%d:%d], 0 offset:48" % (V_TMP, S_DBG, S_DBG + 3))
        a.e("s_cmp_eq_u32 s%d, 0" % S_TASK)
        a.e("s_cbranch_scc0 LA_end")
        a.e("s_mov_b32 s%d, 1" % S_TASK)
        a.e("s_mov_b32 s%d, 0" % S_TYPE)
        for srd, adv in ((S_K, 128 * 196608), (S_V, 128 * 196608)) + (() if opt.get("late", 0) else ((S_O, 128 * O_TASK),)):
            a.e("s_add_u32 s%d, s%d, %d" % (srd, srd, adv))
            a.e("s_addc_u32 s%d, s%d, 0" % (srd + 1, srd + 1))
        if dbg:
            a.e("s_add_u32 s%d, s%d, %d" % (S_DBG, S_DBG, 256 * 8 * 128))
            a.e("s_addc_u32 s%d, s%d, 0" % (S_DBG + 1, S_DBG + 1))
            stamp(a, 0, dbgv)
            a.e("s_memrealtime s[%d:%d]" % (S_TM, S_TM + 1))
            a.e("s_waitcnt lgkmcnt(0)")
            a.e("v_mov_b32 v%d, s%d" % (V_TMP, S_TM))
            a.lines.append("    buffer_store_dword v%d, off, s[%d:%d], 0 offset:52" % (V_TMP, S_DBG, S_DBG + 3))
        addr_rest()
        vmwait(0, " lgkmcnt(0)")
        a.e("s_branch LA_p1_re%d" % pg)
    a.label("LA_end")
    a.e("s_endpgm")


def kd(name, vgpr, sgpr=102):
    return """.amdhsa_kernel %s
  .amdhsa_next_free_vgpr %d
  .amdhsa_next_free_sgpr %d
  .amdhsa_accum_offset %d
  .amdhsa_group_segment_fixed_size 0
  .amdhsa_kernarg_size 104
  .amdhsa_user_sgpr_count 2
  .amdhsa_user_sgpr_kernarg_segment_ptr 1
  .amdhsa_system_sgpr_workgroup_id_x 1
.end_amdhsa_kernel
""" % (name, vgpr, sgpr, (vgpr + 3) // 4 * 4)


def build(opt):
    a = Asm()
    hdr = open("cdna_kernels/%s.s.ref" % NAME).read().splitlines()
    hdr = [l for l in hdr if l.startswith(";") and "@launch" not in l and "Override" not in l and "grid=ceil" not in l]
    import genb
    launches = ["; @launch kernel=attn_kernel grid=(256,1,1) block=(512,1,1) lds=%d" % LDS_A,
                "; @launch kernel=oproj_kernel grid=(256,1,1) block=(512,1,1) lds=%d" % genb.LDS_B]
    out = "\n".join(hdr + launches) + "\n"
    out += '.amdgcn_target "amdgcn-amd-amdhsa--gfx950"\n.text\n'
    gen_attn(a, opt)
    genb.gen_oproj(a, opt)
    out += a.text()
    out += '.section .rodata,"a"\n.p2align 6\n'
    out += kd("attn_kernel", 256)
    out += ".p2align 6\n" + kd("oproj_kernel", genb.NVGPR_B)
    return out


if __name__ == "__main__":
    opt = {}
    outp = "k.s"
    for arg in sys.argv[1:]:
        if "=" in arg:
            k, v = arg.split("=")
            if k == "out":
                outp = v
            else:
                opt[k] = int(v)
    open(outp, "w").write(build(opt))
```

```python
from gen import Asm, vr, interleave, O_TASK

CHB = 38912
OOFF, WOFFB = 0, 18432
NCHB = 3
LDS_B = NCHB * CHB
FLAGS = 0x3f00000
SLAB = 65536
PART = 0x2000000

S_O, S_W, S_PT = 4, 8, 12
S_WAVE, S_WS, S_GRP = 24, 25, 26
S_T0, S_T1, S_T2, S_T3 = 27, 28, 29, 30
S_KO, S_KW = 31, 32
S_M0O, S_M0W = 33, 34
S_CNT = 35
S_P, S_KS, S_B, S_NB = 36, 37, 38, 39
S_PTR = 40
S_WSP = 42
S_CH = 44
S_NT0 = 45
S_DBG = 60
S_TM = 64
S_OD = 48
S_OUT, S_FL = 16, 20
S_TILE = 46
S_SRC = 52
S_NEED = 55

V_L16, V_TMP = 1, 3
V_X1, V_X2, V_X3, V_X4 = 4, 5, 6, 7
V_VW = 8
V_VO = 13
V_AD = 16
V_ACC, V_A, V_B = 28, 88, 112
NVGPR_B = 152


def stampb(a, idx, dbg):
    if not dbg:
        return
    a.e("s_memtime s[%d:%d]" % (S_TM, S_TM + 1))
    a.e("s_waitcnt lgkmcnt(0)")
    a.e("v_mov_b32 v%d, s%d" % (V_TMP, S_TM))
    a.lines.append("    buffer_store_dword v%d, off, s[%d:%d], 0 offset:%d" % (V_TMP, S_DBG, S_DBG + 3, idx * 4))


def gen_oproj(a, opt):
    dbg = opt.get("dbgb", False)
    MG = opt.get("merge", 0)
    if MG:
        a.label("LB_entry")
        a.e("s_mov_b32 s0, s88")
        a.e("s_mov_b32 s1, s89")
        a.e("s_mov_b32 s2, s90")
    else:
        kn = "oproj_kernel"
        a.lines.append(".globl %s\n.p2align 8\n.type %s,@function" % (kn, kn))
        a.label(kn)
        a.e("s_cmp_ge_u32 s2, 256")
        a.e("s_cbranch_scc1 LB_end")
    a.e("s_and_b32 s%d, s2, 7" % S_T0)
    a.e("s_lshr_b32 s%d, s2, 3" % S_T1)
    a.e("s_lshr_b32 s%d, s%d, 2" % (S_P, S_T0))
    a.e("s_and_b32 s%d, s%d, 3" % (S_KS, S_T0))
    if MG:
        a.e("s_bfe_u32 s%d, s%d, 0x20001" % (S_NB, S_T1))
        a.e("s_lshr_b32 s%d, s%d, 3" % (S_B, S_T1))
        a.e("s_and_b32 s%d, s%d, 1" % (S_T1, S_T1))
        a.e("s_lshl_b32 s%d, s%d, 2" % (S_T1, S_T1))
        a.e("s_add_u32 s%d, s%d, s%d" % (S_B, S_B, S_T1))
    else:
        a.e("s_and_b32 s%d, s%d, 3" % (S_NB, S_T1))
        a.e("s_lshr_b32 s%d, s%d, 2" % (S_B, S_T1))
    a.e("s_lshl_b32 s%d, s%d, 1" % (S_CH, S_NB))
    a.e("s_add_u32 s%d, s%d, s%d" % (S_CH, S_CH, S_B))
    a.e("s_and_b32 s%d, s%d, 7" % (S_CH, S_CH))
    a.e("s_mul_i32 s%d, s%d, 3" % (S_CH, S_CH))
    if opt.get("norotb", 1):
        a.e("s_mov_b32 s%d, 0" % S_CH)
    a.e("s_mul_i32 s%d, s%d, 40" % (S_T2, S_P))
    a.e("s_add_u32 s%d, s0, s%d" % (S_T0 + 1, S_T2))
    a.e("s_addc_u32 s%d, s1, 0" % (S_T0 + 2))
    a.e("s_load_dwordx2 s[%d:%d], s[%d:%d], 32" % (S_PTR, S_PTR + 1, S_T0 + 1, S_T0 + 2))
    a.e("s_load_dwordx2 s[%d:%d], s[0:1], 96" % (S_WSP, S_WSP + 1))
    a.e("s_load_dwordx4 s[%d:%d], s[0:1], 80" % (S_OD, S_OD + 3))
    if not MG:
        a.e("v_lshrrev_b32 v%d, 6, v0" % V_TMP)
        a.e("v_and_b32 v0, 63, v0")
        a.e("v_readfirstlane_b32 s%d, v%d" % (S_WAVE, V_TMP))
        a.e("v_lshlrev_b32 v%d, 4, v0" % V_L16)
    a.e("v_lshrrev_b32 v%d, 4, v0" % V_X1)
    a.e("v_and_b32 v%d, 15, v0" % V_X2)
    a.e("s_and_b32 s%d, s%d, 3" % (S_WS, S_WAVE))
    a.e("s_lshr_b32 s%d, s%d, 2" % (S_GRP, S_WAVE))
    a.e("s_mov_b32 s%d, 0x74208630" % S_T3)
    a.e("s_lshl_b32 s%d, s%d, 2" % (S_T0, S_WAVE))
    a.e("s_lshr_b32 s%d, s%d, s%d" % (S_NT0, S_T3, S_T0))
    a.e("s_and_b32 s%d, s%d, 15" % (S_NT0, S_NT0))
    n0 = len(a.lines)
    a.e("v_mul_u32_u24 v%d, 0xa00, v%d" % (V_X3, V_X1))
    a.e("v_bfe_u32 v%d, v0, 2, 2" % V_X4)
    a.e("v_lshl_add_u32 v%d, v%d, 6, v%d" % (V_X3, V_X4, V_X3))
    a.e("v_and_b32 v%d, 3, v0" % V_X4)
    a.e("v_lshl_add_u32 v%d, v%d, 3, v%d" % (V_X3, V_X4, V_X3))
    for tau in range(3):
        a.e("s_add_u32 s%d, s%d, %d" % (S_T3, S_NT0, tau))
        a.e("v_xor_b32 v%d, s%d, v%d" % (V_X4, S_T3, V_X1))
        a.e("v_and_b32 v%d, 1, v%d" % (V_X4, V_X4))
        a.e("v_lshl_add_u32 v%d, v%d, 5, v%d" % (V_AD + tau, V_X4, V_X3))
        a.e("s_lshr_b32 s%d, s%d, 1" % (S_T3, S_T3))
        a.e("s_lshl_b32 s%d, s%d, 8" % (S_T3, S_T3))
        a.e("s_add_u32 s%d, s%d, 0x%x" % (S_T3, S_T3, WOFFB))
        a.e("v_add_u32 v%d, s%d, v%d" % (V_AD + tau, S_T3, V_AD + tau))
    a.e("v_mov_b32 v%d, v%d" % (V_AD + 3, V_L16))
    for sl in (1, 2):
        for k in range(4):
            a.e("v_add_u32 v%d, 0x%x, v%d" % (V_AD + 4 * sl + k, sl * CHB, V_AD + k))
    for i in range(60):
        a.e("v_mov_b32 v%d, 0" % (V_ACC + i))
    late = a.lines[n0:]
    del a.lines[n0:]
    for k in range(5):
        a.e("v_mov_b32 v%d, 0" % (V_VW + k))
    a.e("s_cmp_eq_u32 s%d, 0" % S_GRP)
    a.e("s_cbranch_scc0 LB_nw")
    for k in range(5):
        a.e("s_mul_i32 s%d, s%d, 20" % (S_T3, S_WS))
        a.e("s_add_u32 s%d, s%d, %d" % (S_T3, S_T3, 4 * k))
        a.e("v_add_u32 v%d, s%d, v%d" % (V_X2, S_T3, V_X1))
        a.e("v_mul_u32_u24 v%d, 0xcd, v%d" % (V_X3, V_X2))
        a.e("v_lshrrev_b32 v%d, 10, v%d" % (V_X3, V_X3))
        a.e("v_mul_u32_u24 v%d, 5, v%d" % (V_X4, V_X3))
        a.e("v_sub_u32 v%d, v%d, v%d" % (V_X2, V_X2, V_X4))
        a.e("v_and_b32 v%d, 2, v%d" % (V_X4, V_X3))
        a.e("v_xor_b32 v%d, v%d, v0" % (V_X4, V_X4))
        a.e("v_and_b32 v%d, 3, v%d" % (V_X4, V_X4))
        a.e("v_lshlrev_b32 v%d, 4, v%d" % (V_X4, V_X4))
        a.e("v_lshl_add_u32 v%d, v%d, 6, v%d" % (V_X2, V_X2, V_X4))
        a.e("v_bfe_u32 v%d, v0, 2, 2" % V_X4)
        a.e("v_lshl_add_u32 v%d, v%d, 2, v%d" % (V_X3, V_X3, V_X4))
        a.e("v_mul_u32_u24 v%d, 0x500, v%d" % (V_VW + k, V_X3))
        a.e("v_add_u32 v%d, v%d, v%d" % (V_VW + k, V_VW + k, V_X2))
    a.label("LB_nw")
    a.e("s_mul_i32 s%d, s%d, 5120" % (S_M0W, S_WS))
    a.e("s_mul_i32 s%d, s%d, 4608" % (S_M0O, S_WS))
    a.e("v_add_u32 v%d, s%d, v%d" % (V_VO, S_M0O, V_L16))
    a.e("s_waitcnt lgkmcnt(0)")
    a.e("s_lshl_b32 s%d, s%d, 3" % (S_T3, S_P))
    a.e("s_add_u32 s%d, s%d, s%d" % (S_T3, S_T3, S_B))
    a.e("s_lshl_b32 s%d, s%d, 2" % (S_T0, S_T3))
    a.e("s_add_u32 s%d, s%d, s%d" % (S_T1, S_T0, S_KS))
    a.e("s_mul_i32 s%d, s%d, %d" % (S_T1, S_T1, 8 * O_TASK))
    a.e("s_add_u32 s%d, s%d, s%d" % (S_O, S_WSP, S_T1))
    a.e("s_addc_u32 s%d, s%d, 0" % (S_O + 1, S_WSP + 1))
    a.e("s_mov_b32 s%d, %d" % (S_O + 2, 8 * O_TASK))
    a.e("s_mov_b32 s%d, 0x20000" % (S_O + 3))
    a.e("s_add_u32 s%d, s%d, s%d" % (S_TILE, S_T0, S_NB))
    a.e("s_mul_i32 s%d, s%d, %d" % (S_T0, S_TILE, 4 * SLAB))
    a.e("s_add_u32 s%d, s%d, 0x%x" % (S_T0, S_T0, PART))
    a.e("s_add_u32 s%d, s%d, s%d" % (S_PT, S_WSP, S_T0))
    a.e("s_addc_u32 s%d, s%d, 0" % (S_PT + 1, S_WSP + 1))
    a.e("s_mov_b32 s%d, %d" % (S_PT + 2, 4 * SLAB))
    a.e("s_mov_b32 s%d, 0x20000" % (S_PT + 3))
    for k in range(3):
        a.e("s_add_u32 s%d, s%d, %d" % (S_T0, S_KS, k + 1))
        a.e("s_and_b32 s%d, s%d, 3" % (S_T0, S_T0))
        a.e("s_mul_i32 s%d, s%d, %d" % (S_SRC + k, S_T0, SLAB))
    a.e("s_mul_i32 s%d, s%d, %d" % (S_T0, S_B, 144 * 2560))
    a.e("s_mul_i32 s%d, s%d, 1280" % (S_T1, S_P))
    a.e("s_add_u32 s%d, s%d, s%d" % (S_T0, S_T0, S_T1))
    a.e("s_mul_i32 s%d, s%d, 320" % (S_T1, S_NB))
    a.e("s_add_u32 s%d, s%d, s%d" % (S_T0, S_T0, S_T1))
    a.e("s_add_u32 s%d, s%d, s%d" % (S_OUT, S_OD, S_T0))
    a.e("s_addc_u32 s%d, s%d, 0" % (S_OUT + 1, S_OD + 1))
    a.e("s_sub_u32 s%d, 2949120, s%d" % (S_OUT + 2, S_T0))
    a.e("s_mov_b32 s%d, 0x20000" % (S_OUT + 3))
    if MG:
        a.e("s_mov_b32 s%d, s%d" % (S_FL, S_OD + 2))
        a.e("s_mov_b32 s%d, s%d" % (S_FL + 1, S_OD + 3))
        a.e("s_mov_b32 s%d, 256" % (S_FL + 2))
        a.e("s_lshl_b32 s%d, s%d, 3" % (S_NEED, S_P))
        a.e("s_add_u32 s%d, s%d, s%d" % (S_NEED, S_NEED, S_B))
        a.e("s_lshl_b32 s%d, s%d, 2" % (S_NEED, S_NEED))
        a.e("s_add_u32 s%d, s%d, s%d" % (S_NEED, S_NEED, S_KS))
        a.e("s_lshl_b32 s%d, s%d, 2" % (S_NEED, S_NEED))
    else:
        a.e("s_add_u32 s%d, s%d, 0x%x" % (S_FL, S_WSP, FLAGS))
        a.e("s_addc_u32 s%d, s%d, 0" % (S_FL + 1, S_WSP + 1))
        a.e("s_mov_b32 s%d, 8192" % (S_FL + 2))
    a.e("s_mov_b32 s%d, 0x20000" % (S_FL + 3))
    a.e("s_mul_i32 s%d, s%d, 1966080" % (S_T0, S_KS))
    a.e("s_mul_i32 s%d, s%d, 320" % (S_T1, S_NB))
    a.e("s_add_u32 s%d, s%d, s%d" % (S_T0, S_T0, S_T1))
    a.e("s_add_u32 s%d, s%d, s%d" % (S_W, S_PTR, S_T0))
    a.e("s_addc_u32 s%d, s%d, 0" % (S_W + 1, S_PTR + 1))
    a.e("s_sub_u32 s%d, 1966080, s%d" % (S_W + 2, S_T1))
    a.e("s_mov_b32 s%d, 0x20000" % (S_W + 3))
    a.e("s_mul_i32 s%d, s%d, 18432" % (S_KO, S_CH))
    a.e("s_mul_i32 s%d, s%d, 81920" % (S_KW, S_CH))
    if dbg:
        a.e("s_lshl_b32 s%d, s2, 3" % S_T3)
        a.e("s_add_u32 s%d, s%d, s%d" % (S_T3, S_T3, S_WAVE))
        a.e("s_lshl_b32 s%d, s%d, 7" % (S_T3, S_T3))
        a.e("s_add_u32 s%d, s%d, 0x4800000" % (S_T3, S_T3))
        a.e("s_add_u32 s%d, s%d, s%d" % (S_DBG, S_WSP, S_T3))
        a.e("s_addc_u32 s%d, s%d, 0" % (S_DBG + 1, S_WSP + 1))
        a.e("s_mov_b32 s%d, 128" % (S_DBG + 2))
        a.e("s_mov_b32 s%d, 0x20000" % (S_DBG + 3))
        a.e("s_memrealtime s[%d:%d]" % (S_TM, S_TM + 1))
        a.e("s_waitcnt lgkmcnt(0)")
        a.e("v_mov_b32 v%d, s%d" % (V_TMP, S_TM))
        a.lines.append("    buffer_store_dword v%d, off, s[%d:%d], 0 offset:52" % (V_TMP, S_DBG, S_DBG + 3))
    stampb(a, 0, dbg)
    WNT = " nt" if opt.get("wont") else ""

    def dma_chunk(grp, slot, tag):
        L = []
        base = slot * CHB
        if grp == 1:
            for n in range(5):
                g = ["s_add_u32 m0, s%d, 0x%x" % (S_M0O, base + OOFF + 1024 * n),
                     "s_add_u32 s%d, s%d, 0x%x" % (S_T3, S_KO, n * 1024)]
                if n == 4:
                    g.append("s_mov_b32 exec_hi, 0")
                if not opt.get("bno"):
                    g.append(("buffer_load_dwordx4 v%d, s[%d:%d], s%d offen lds" % (V_VO, S_O, S_O + 3, S_T3), tag))
                if n == 4:
                    g.append("s_mov_b32 exec_hi, -1")
                L.append(g)
            L.append(["s_add_u32 s%d, s%d, 18432" % (S_KO, S_KO),
                      "s_cmp_ge_u32 s%d, %d" % (S_KO, 8 * O_TASK),
                      "s_cselect_b32 s%d, 0, s%d" % (S_KO, S_KO)])
        else:
            for k in range(5):
                L.append(["s_add_u32 m0, s%d, 0x%x" % (S_M0W, base + WOFFB + 1024 * k), "s_nop 0",
                          ("buffer_load_dwordx4 v%d, s[%d:%d], s%d offen%s lds" % (V_VW + k, S_W, S_W + 3, S_KW, WNT), tag)
                          if not opt.get("bnw") else "s_nop 0"])
            L.append(["s_add_u32 s%d, s%d, 81920" % (S_KW, S_KW),
                      "s_cmp_ge_u32 s%d, 1966080" % S_KW,
                      "s_cselect_b32 s%d, 0, s%d" % (S_KW, S_KW)])
        return L

    def reads(tiles, nn, slot, kh):
        fset = kh
        ad = V_AD + 4 * slot
        L = []
        for tau in range(nn):
            d = V_A + fset * 12 + tau * 4
            L.append(["ds_read_b64_tr_b16 %s, v%d offset:%d" % (vr(d, 2), ad + tau, kh * 10240)])
            L.append(["ds_read_b64_tr_b16 %s, v%d offset:%d" % (vr(d + 2, 2), ad + tau, kh * 10240 + 1280)])
        for j, t in enumerate(tiles):
            d = V_B + fset * 20 + j * 4
            L.append(["ds_read_b128 %s, v%d offset:%d" % (vr(d, 4), ad + 3, OOFF + kh * 9216 + t * 1024)])
        return L

    def mfmas(tiles, nn, fset):
        M = []
        for j, t in enumerate(tiles):
            for tau in range(nn):
                acc = V_ACC + (j * 3 + tau) * 4
                M.append("v_mfma_f32_16x16x32_bf16 %s, %s, %s, %s" % (
                    vr(acc, 4), vr(V_A + fset * 12 + tau * 4, 4), vr(V_B + fset * 20 + j * 4, 4), vr(acc, 4)))
        return M

    def spread(mf, oth, dm):
        nm = len(mf)
        span = max(1, nm * opt.get("bspan", 60) // 100)
        ri = di = 0
        d0 = opt.get("bd0", 1)
        for i, m in enumerate(mf):
            a.e(m)
            k = -(-(len(oth) - ri) // max(span - i, 1))
            for _ in range(k):
                a.g1(oth[ri])
                ri += 1
            if d0:
                if ri == len(oth) and di < len(dm) and i >= span:
                    k = -(-(len(dm) - di) // (nm - i))
                    for _ in range(k):
                        a.g1(dm[di])
                        di += 1
            elif di < len(dm) and (i + 1) * len(dm) >= (di + 1) * nm - nm // 2:
                a.g1(dm[di])
                di += 1
        while di < len(dm):
            a.g1(dm[di])
            di += 1

    def signal_poll(s_add, inc, s_poll, shift, target, acquire):
        lw, lp2, ld = a.newlabel("LB_fw"), a.newlabel("LB_fp"), a.newlabel("LB_fd")
        a.e("s_cmp_eq_u32 s%d, 0" % S_WAVE)
        a.e("s_cbranch_scc0 %s" % lw)
        a.e("v_mov_b32 v%d, 0x%x" % (V_X3, inc))
        a.e("s_mov_b64 exec, 1")
        a.e("buffer_atomic_add v%d, off, s[%d:%d], s%d sc1" % (V_X3, S_FL, S_FL + 3, s_add))
        a.e("s_mov_b32 s%d, 0" % S_CNT)
        a.label(lp2)
        a.e("buffer_load_dword v%d, off, s[%d:%d], s%d sc1" % (V_X4, S_FL, S_FL + 3, s_poll))
        a.e("s_waitcnt vmcnt(0)")
        a.e("v_readfirstlane_b32 s%d, v%d" % (S_T1, V_X4))
        a.e("s_add_u32 s%d, s%d, 1" % (S_CNT, S_CNT))
        a.e("s_bfe_u32 s%d, s%d, 0x%x" % (S_T1, S_T1, 0x100000 | shift))
        a.e("s_cmp_ge_u32 s%d, %d" % (S_T1, target))
        a.e("s_cbranch_scc1 %s" % ld)
        if opt.get("slp", 0):
            a.e("s_sleep %d" % opt.get("slp", 0))
        a.e("s_cmp_lt_u32 s%d, 0x40000" % S_CNT)
        a.e("s_cbranch_scc1 %s" % lp2)
        a.label(ld)
        a.e("s_mov_b64 exec, -1")
        if acquire:
            a.e("buffer_inv sc1")
            a.e("s_waitcnt vmcnt(0)")
        a.label(lw)

    a.e("s_lshr_b32 s%d, s%d, 1" % (S_T3, S_WAVE))
    for v in range(1, 4):
        a.e("s_cmp_eq_u32 s%d, %d" % (S_T3, v))
        a.e("s_cbranch_scc1 LB_v%d" % v)
    for v in range(4):
        grp = v >> 1
        nn = (3, 2, 2, 3)[v]
        tiles = [0, 1, 2, 3, 4] if grp == 0 else [5, 6, 7, 8]
        if v:
            a.label("LB_v%d" % v)
        bp = opt.get("bprio", 0)
        if (bp == 1 and grp == 1) or (bp == 2 and len(tiles) * nn <= 10):
            a.e("s_setprio 1")
        if MG:
            if grp == 0:
                a.grp(dma_chunk(grp, 0, 0))
                a.grp(dma_chunk(grp, 1, 1))
                a.e("s_waitcnt vmcnt(10)")
            else:
                a.e("s_waitcnt vmcnt(0)")
            a.e("s_barrier")
            if v == 0:
                a.e("s_add_u32 s%d, s91, 64" % S_T0)
                signal_poll(S_T0, 1, S_NEED, 0, 8, True)
            a.e("s_barrier")
            if grp == 1:
                a.grp(dma_chunk(grp, 0, 0))
                a.grp(dma_chunk(grp, 1, 1))
        else:
            a.grp(dma_chunk(grp, 0, 0))
            a.grp(dma_chunk(grp, 1, 1))
        a.lines += late
        a.e("s_waitcnt vmcnt(5)")
        a.e("s_barrier")
        a.grp(reads(tiles, nn, 0, 0))
        a.grp(dma_chunk(grp, 2, 2)[:3])
        a.e("s_mov_b32 s%d, 0" % S_CNT)
        for last in (0, 1):
            lp = "LB_loop%d" % v
            if not last:
                a.label(lp)
            for c in range(3):
                a.e("s_waitcnt lgkmcnt(0)")
                dm = []
                if not (last and c > 0):
                    dm = dma_chunk(grp, (c + 2) % 3, None)[3:]
                spread(mfmas(tiles, nn, 0), reads(tiles, nn, c, 1), dm)
                if not last:
                    a.e("s_waitcnt vmcnt(5) lgkmcnt(0)")
                else:
                    a.e("s_waitcnt vmcnt(%d) lgkmcnt(0)" % (5 if c == 0 else 0))
                a.e("s_barrier")
                oth = []
                if not (last and c == 2):
                    oth = reads(tiles, nn, (c + 1) % 3, 0)
                dm = []
                if not last:
                    dm = dma_chunk(grp, c, None)[:3]
                spread(mfmas(tiles, nn, 1), oth, dm)
            if not last and opt.get("dbgb2"):
                a.e("s_memtime s[%d:%d]" % (S_TM, S_TM + 1))
                a.e("s_waitcnt lgkmcnt(0)")
                a.e("v_mov_b32 v%d, s%d" % (V_TMP, S_TM))
                a.e("s_lshl_b32 s%d, s%d, 2" % (S_T3, S_CNT))
                a.lines.append("    buffer_store_dword v%d, off, s[%d:%d], s%d offset:64" % (V_TMP, S_DBG, S_DBG + 3, S_T3))
            if not last:
                a.e("s_add_u32 s%d, s%d, 1" % (S_CNT, S_CNT))
                a.e("s_cmp_lt_u32 s%d, 7" % S_CNT)
                a.e("s_cbranch_scc1 %s" % lp)
        stampb(a, 1, dbg)
        a.e("s_nop 7")
        accs = [(j, t, tau) for j, t in enumerate(tiles) for tau in range(nn)]
        a.e("s_lshl_b32 s%d, s%d, 13" % (S_T0, S_WAVE))
        a.e("v_add_u32 v%d, s%d, v%d" % (V_X1, S_T0, V_L16))
        a.e("s_mul_i32 s%d, s%d, %d" % (S_T1, S_KS, SLAB))
        for r in range(4):
            l = a.newlabel("LB_ps")
            a.e("s_cmp_eq_u32 s%d, %d" % (S_KS, r))
            a.e("s_cbranch_scc1 %s" % l)
            a.e("s_add_u32 s%d, s%d, %d" % (S_T3, S_T1, r * 2048))
            mine = accs[r::4]
            for pr in range((len(mine) + 1) // 2):
                d = V_A + (r * 2 + pr) * 4
                for hh, (j, t, tau) in enumerate(mine[2 * pr:2 * pr + 2]):
                    acc = V_ACC + (j * 3 + tau) * 4
                    a.e("v_cvt_pk_bf16_f32 v%d, v%d, v%d" % (d + 2 * hh, acc, acc + 1))
                    a.e("v_cvt_pk_bf16_f32 v%d, v%d, v%d" % (d + 2 * hh + 1, acc + 2, acc + 3))
                a.e("buffer_store_dwordx4 %s, v%d, s[%d:%d], s%d offen offset:%d sc1" % (
                    vr(d, 4), V_X1, S_PT, S_PT + 3, S_T3, pr * 1024))
            a.label(l)
        a.e("v_and_b32 v%d, 15, v0" % V_X2)
        a.e("v_mul_u32_u24 v%d, 0xa00, v%d" % (V_X2, V_X2))
        a.e("v_lshrrev_b32 v%d, 4, v0" % V_X3)
        a.e("v_lshl_add_u32 v%d, v%d, 3, v%d" % (V_X2, V_X3, V_X2))
        a.e("s_lshl_b32 s%d, s%d, 5" % (S_T0, S_NT0))
        a.e("v_add_u32 v%d, s%d, v%d" % (V_X2, S_T0, V_X2))
        a.e("s_waitcnt vmcnt(0)")
        stampb(a, 3, dbg)
        a.e("s_barrier")
        stampb(a, 4, dbg)
        if v == 0:
            a.e("s_lshl_b32 s%d, s%d, %d" % (S_T0, S_TILE, 2 if MG else 7))
            if MG:
                signal_poll(S_T0, 0x10000, S_T0, 16, 4, False)
            else:
                signal_poll(S_T0, 1, S_T0, 0, 4, False)
        a.e("s_barrier")
        stampb(a, 5, dbg)
        for r in range(4):
            l = a.newlabel("LB_pr")
            a.e("s_cmp_eq_u32 s%d, %d" % (S_KS, r))
            a.e("s_cbranch_scc0 %s" % l)
            mine = accs[r::4]
            npr = (len(mine) + 1) // 2
            for pr in range(npr):
                for k in range(3):
                    a.e("s_add_u32 s%d, s%d, %d" % (S_T3, S_SRC + k, r * 2048))
                    a.e("buffer_load_dwordx4 %s, v%d, s[%d:%d], s%d offen offset:%d sc1" % (
                        vr(V_A + (pr * 3 + k) * 4, 4), V_X1, S_PT, S_PT + 3, S_T3, pr * 1024))
            nst = 0
            for i, (j, t, tau) in enumerate(mine):
                pr, hh = i >> 1, i & 1
                acc = V_ACC + (j * 3 + tau) * 4
                if hh == 0:
                    a.e("s_waitcnt vmcnt(%d)" % (3 * (npr - 1 - pr) + nst))
                for k in range(3):
                    for e in range(2):
                        src = V_A + (pr * 3 + k) * 4 + 2 * hh + e
                        a.e("v_lshlrev_b32 v%d, 16, v%d" % (V_X3, src))
                        a.e("v_and_b32 v%d, 0xffff0000, v%d" % (V_X4, src))
                        a.e("v_add_f32 v%d, v%d, v%d" % (acc + 2 * e, acc + 2 * e, V_X3))
                        a.e("v_add_f32 v%d, v%d, v%d" % (acc + 2 * e + 1, acc + 2 * e + 1, V_X4))
                a.e("v_cvt_pk_bf16_f32 v%d, v%d, v%d" % (acc, acc, acc + 1))
                a.e("v_cvt_pk_bf16_f32 v%d, v%d, v%d" % (acc + 1, acc + 2, acc + 3))
                a.e("s_mov_b32 s%d, %d" % (S_T3, t * 40960))
                a.e("buffer_store_dwordx2 %s, v%d, s[%d:%d], s%d offen offset:%d" % (
                    vr(acc, 2), V_X2, S_OUT, S_OUT + 3, S_T3, tau * 32))
                nst += 1
            a.label(l)
        stampb(a, 2, dbg)
        if dbg:
            a.e("s_waitcnt vmcnt(0)")
            a.e("s_memrealtime s[%d:%d]" % (S_TM, S_TM + 1))
            a.e("s_waitcnt lgkmcnt(0)")
            a.e("v_mov_b32 v%d, s%d" % (V_TMP, S_TM))
            a.lines.append("    buffer_store_dword v%d, off, s[%d:%d], 0 offset:48" % (V_TMP, S_DBG, S_DBG + 3))
        a.e("s_endpgm")
    if not MG:
        a.label("LB_end")
        a.e("s_endpgm")


def gen_reduce(a, opt):
    kn = "reduce_kernel"
    a.lines.append(".globl %s\n.p2align 8\n.type %s,@function" % (kn, kn))
    a.label(kn)
    a.e("s_cmp_ge_u32 s2, 1440")
    a.e("s_cbranch_scc1 LC_end")
    a.e("s_load_dwordx2 s[4:5], s[0:1], 96")
    a.e("s_load_dwordx2 s[6:7], s[0:1], 80")
    a.e("v_lshrrev_b32 v1, 6, v0")
    a.e("v_and_b32 v0, 63, v0")
    a.e("v_readfirstlane_b32 s20, v1")
    a.e("s_lshl_b32 s21, s2, 2")
    a.e("s_add_u32 s21, s21, s20")
    a.e("s_mul_hi_u32 s22, s21, 0x2d82d83")
    a.e("s_mul_i32 s23, s22, 90")
    a.e("s_sub_u32 s23, s21, s23")
    a.e("s_mul_i32 s24, s22, %d" % (4 * 92160))
    a.e("s_lshl_b32 s25, s23, 10")
    a.e("s_add_u32 s24, s24, s25")
    a.e("s_add_u32 s24, s24, 0x%x" % PART)
    a.e("v_lshlrev_b32 v2, 4, v0")
    a.e("v_add_u32 v2, s24, v2")
    a.e("s_waitcnt lgkmcnt(0)")
    a.e("s_mov_b32 s8, s4")
    a.e("s_mov_b32 s9, s5")
    a.e("s_mov_b32 s10, 0x10000000")
    a.e("s_mov_b32 s11, 0x20000")
    a.e("s_mov_b32 s12, s6")
    a.e("s_mov_b32 s13, s7")
    a.e("s_mov_b32 s14, 2949120")
    a.e("s_mov_b32 s15, 0x20000")
    for k in range(4):
        a.e("s_mov_b32 s26, %d" % (k * 92160))
        a.e("buffer_load_dwordx4 v[%d:%d], v2, s[8:11], s26 offen" % (4 + 4 * k, 7 + 4 * k))
    a.e("s_mul_i32 s25, s23, 103")
    a.e("s_lshr_b32 s25, s25, 10")
    a.e("s_mul_i32 s26, s25, 10")
    a.e("s_sub_u32 s26, s23, s26")
    a.e("s_and_b32 s27, s22, 3")
    a.e("s_lshr_b32 s28, s22, 2")
    a.e("s_and_b32 s29, s28, 7")
    a.e("s_lshr_b32 s28, s28, 3")
    a.e("s_mul_i32 s29, s29, 144")
    a.e("s_lshl_b32 s25, s25, 4")
    a.e("s_add_u32 s29, s29, s25")
    a.e("s_mul_i32 s29, s29, 2560")
    a.e("s_mul_i32 s28, s28, 1280")
    a.e("s_mul_i32 s27, s27, 320")
    a.e("s_lshl_b32 s26, s26, 5")
    a.e("s_add_u32 s29, s29, s28")
    a.e("s_add_u32 s29, s29, s27")
    a.e("s_add_u32 s29, s29, s26")
    a.e("v_and_b32 v3, 15, v0")
    a.e("v_mul_u32_u24 v3, 0xa00, v3")
    a.e("v_lshrrev_b32 v1, 4, v0")
    a.e("v_lshl_add_u32 v3, v1, 3, v3")
    a.e("s_waitcnt vmcnt(0)")
    for r in range(4):
        a.e("v_add_f32 v%d, v%d, v%d" % (4 + r, 4 + r, 8 + r))
        a.e("v_add_f32 v%d, v%d, v%d" % (12 + r, 12 + r, 16 + r))
    for r in range(4):
        a.e("v_add_f32 v%d, v%d, v%d" % (4 + r, 4 + r, 12 + r))
    a.e("v_cvt_pk_bf16_f32 v4, v4, v5")
    a.e("v_cvt_pk_bf16_f32 v5, v6, v7")
    a.e("buffer_store_dwordx2 v[4:5], v3, s[12:15], s29 offen")
    a.label("LC_end")
    a.e("s_endpgm")
```

```python
import sys, math, struct

NAME = "concat_heads__mha_block_cached__mha_block_cached__near_ridge"


class Asm:
    def __init__(self):
        self.lines = []
        self.uid = 0
        self.vm = []

    def e(self, s, tag=None):
        self.lines.append("    " + s)
        if s.startswith("buffer_") or s.startswith("global_"):
            self.vm.append(tag)

    def grp(self, groups):
        for g in groups:
            self.g1(g)

    def g1(self, g):
        for ins in g:
            if isinstance(ins, tuple):
                self.e(ins[0], ins[1])
            else:
                self.e(ins)

    def vmn(self, tag):
        idx = [i for i, t in enumerate(self.vm) if t == tag]
        assert idx, tag
        n = len(self.vm) - 1 - idx[-1]
        assert n <= 63, n
        return n

    def c(self, s):
        self.lines.append("    ; " + s)

    def label(self, l):
        self.lines.append(l + ":")

    def newlabel(self, p="L"):
        self.uid += 1
        return "%s_%d" % (p, self.uid)

    def text(self):
        return "\n".join(self.lines) + "\n"


def vr(b, n=1):
    return "v%d" % b if n == 1 else "v[%d:%d]" % (b, b + n - 1)


def f32(x):
    return struct.unpack("<I", struct.pack("<f", x))[0]


def interleave(a, mfmas, others, lead=1, span=None):
    n = len(mfmas) if span is None else min(span, len(mfmas))
    m = len(others)
    oi = 0
    for i, mf in enumerate(mfmas):
        a.e(mf)
        if i + 1 >= lead and oi < m:
            rem = max(n - i, 1)
            k = -(-(m - oi) // rem)
            for _ in range(k):
                a.g1(others[oi])
                oi += 1
    while oi < m:
        a.g1(others[oi])
        oi += 1


CH = 43008
XLOC = (0, 67584, 86016)
WLOC = (18432, 43008, 104448)
NCH = 3
KST = 98304
KR = 4
S_PA, S_PB, S_TA, S_TB = 0, 1, 2, 3
VBASE = 73728
VSLOT = 12288
NV = 7
PSLOT = 9216
REDB = 159744
LDS_A = 163840
O_TASK = 55296
MAXB = 55296
SUMB = 159744 - 512

S_X, S_W, S_K, S_V, S_O = 4, 8, 12, 16, 20
S_WAVE, S_WS, S_GRP = 24, 25, 26
S_T0, S_T1, S_T2, S_T3 = 27, 28, 29, 30
S_KX, S_KW = 31, 32
S_M0X, S_M0W = 33, 34
S_TYPE = 35
S_C = 36
S_M0K = 37
S_VR, S_PR = 38, 39
S_CH = 43
S_PTR = 44
S_WSP = 52
S_P, S_B, S_H = 54, 55, 56
S_TQ = 57
S_HI, S_TASK = 58, 59
S_FLOW, S_PARK = 90, 91
S_Q2 = 92
S_QW = 40
S_DE, S_DC = 96, 99
S_WO = 48
S_XN = 44
S_DBG = 60
S_TM = 64

V_LANE, V_L16, V_VOFFV, V_TMP = 0, 1, 2, 3
V_QF = 4
V_S = 16
V_K = 160
V_ACC1, V_A1, V_B1 = 16, 76, 100
V_TRA, V_TRB, V_XA, V_XB = 140, 143, 146, 148
V_VX0, V_VX1, V_VW = 152, 153, 154
V_QW = 155
V_X1, V_X2, V_X3, V_X4 = 4, 5, 6, 7
V_VK0, V_VK1, V_KR0, V_KR1 = 12, 13, 14, 15
V_MC = 160
V_SUM = 169
V_RT = 180
V_ACC3 = 180
V_A3 = (240, 72)
V_B3 = (16, 52)
V_ET = 36
V_TVL, V_TVH = 4, 84
V_PB0, V_PB1 = 1, 8
V_PW = 9
V_Y, V_YW = 10, 11
V_QW3 = 12
V_ONE = 252


def S(kt, t):
    return V_S + (kt * 9 + t) * 4


def Kf(kt, s):
    return V_K + (kt * 6 + s) * 4


CLK = "s_memtime"


def stamp(a, idx, dbg):
    if not dbg:
        return
    a.e("%s s[%d:%d]" % (CLK, S_TM, S_TM + 1))
    a.e("s_waitcnt lgkmcnt(0)")
    a.e("v_mov_b32 v%d, s%d" % (dbg, S_TM))
    a.lines.append("    buffer_store_dword v%d, off, s[%d:%d], 0 offset:%d" % (dbg, S_DBG, S_DBG + 3, idx * 4))


def xlane_reduce(a, regs, tmps, op):
    for sw in ("v_permlane32_swap_b32", "v_permlane16_swap_b32"):
        for r, t in zip(regs, tmps):
            a.e("v_mov_b32 v%d, v%d" % (t, r))
        a.e("s_nop 1")
        for r, t in zip(regs, tmps):
            a.e("%s v%d, v%d" % (sw, r, t))
        a.e("s_nop 1")
        for r, t in zip(regs, tmps):
            a.e("%s v%d, v%d, v%d" % (op, r, r, t))


def gen_attn(a, opt):
    dbg = opt.get("dbg", False)
    global CLK
    if opt.get("rt"):
        CLK = "s_memrealtime"
    MG = opt.get("merge", 0)
    kn = NAME + "_kernel" if MG else "attn_kernel"
    x0, x1 = V_XA, V_XA + 1

    def tr_addr(dst, base, t1, t2):
        a.e("v_lshrrev_b32 v%d, 4, v0" % t1)
        a.e("v_bfe_u32 v%d, v0, 2, 2" % t2)
        a.e("v_lshl_add_u32 v%d, v%d, 3, v%d" % (t1, t1, t2))
        a.e("v_and_b32 v%d, 3, v0" % t2)
        a.e("v_lshlrev_b32 v%d, 3, v%d" % (t2, t2))
        a.e("v_lshl_add_u32 v%d, v%d, 7, v%d" % (t1, t1, t2))
        a.e("v_bfe_u32 v%d, v0, 3, 2" % t2)
        for tau in range(3):
            a.e("v_xor_b32 v%d, s%d, v%d" % (dst + tau, S_DE + tau, t2))
            a.e("v_lshl_add_u32 v%d, v%d, 5, v%d" % (dst + tau, dst + tau, t1))
            a.e("s_add_u32 s%d, s%d, 0x%x" % (S_T3, S_DC + tau, base))
            a.e("v_add_u32 v%d, s%d, v%d" % (dst + tau, S_T3, dst + tau))

    def addr_dma(V_X1=V_X1, V_X2=V_X2, V_X3=V_X3, V_X4=V_X4):
        a.e("v_lshrrev_b32 v%d, 4, v0" % V_X1)
        a.e("v_lshrrev_b32 v%d, 3, v0" % V_X2)
        a.e("s_lshl_b32 s%d, s%d, 3" % (S_T3, S_WS))
        a.e("v_add_u32 v%d, s%d, v%d" % (V_X2, S_T3, V_X2))
        a.e("v_bfe_u32 v%d, v0, 1, 2" % V_X3)
        a.e("v_and_b32 v%d, 1, v%d" % (V_X4, V_X1))
        a.e("v_xor_b32 v%d, v%d, v%d" % (V_X3, V_X3, V_X4))
        a.e("s_and_b32 s%d, s%d, 1" % (S_T3, S_WS))
        a.e("s_lshl_b32 s%d, s%d, 1" % (S_T3, S_T3))
        a.e("v_xor_b32 v%d, s%d, v%d" % (V_X3, S_T3, V_X3))
        a.e("v_and_b32 v%d, 1, v0" % V_X4)
        a.e("v_lshlrev_b32 v%d, 4, v%d" % (V_X4, V_X4))
        a.e("v_lshl_add_u32 v%d, v%d, 5, v%d" % (V_X3, V_X3, V_X4))
        a.e("v_mul_u32_u24 v%d, 0x3000, v%d" % (V_VW, V_X2))
        a.e("v_add_u32 v%d, v%d, v%d" % (V_VW, V_VW, V_X3))
        a.e("v_mul_u32_u24 v%d, 0x180, v%d" % (V_VOFFV, V_X2))
        a.e("v_add_u32 v%d, v%d, v%d" % (V_VOFFV, V_VOFFV, V_X3))
        a.e("s_mul_i32 s%d, s%d, 36" % (S_T3, S_WS))
        a.e("v_lshrrev_b32 v%d, 3, v0" % V_X2)
        a.e("v_add_u32 v%d, s%d, v%d" % (V_X2, S_T3, V_X2))
        a.e("v_bfe_u32 v%d, v%d, 1, 3" % (V_X3, V_X2))
        a.e("v_and_b32 v%d, 7, v0" % V_X4)
        a.e("v_xor_b32 v%d, v%d, v%d" % (V_X3, V_X3, V_X4))
        a.e("v_lshlrev_b32 v%d, 4, v%d" % (V_X3, V_X3))
        a.e("v_mul_u32_u24 v%d, 0x500, v%d" % (V_X2, V_X2))
        a.e("v_add_u32 v%d, v%d, v%d" % (V_VX0, V_X2, V_X3))
        a.e("v_xor_b32 v%d, 64, v%d" % (V_X3, V_X3))
        a.e("v_add_u32 v%d, v%d, v%d" % (V_VX1, V_X2, V_X3))

    def qw_addr(dst):
        a.e("v_and_b32 v%d, 15, v0" % (dst + 2))
        a.e("v_lshlrev_b32 v%d, 4, v%d" % (dst + 2, dst + 2))
        a.e("v_lshrrev_b32 v%d, 5, v0" % dst)
        a.e("v_lshl_add_u32 v%d, v%d, 8, v%d" % (dst + 2, dst, dst + 2))
        a.e("v_bfe_u32 v%d, v0, 4, 1" % dst)
        a.e("v_lshl_add_u32 v%d, v%d, 3, v%d" % (dst + 2, dst, dst + 2))
        for tau in range(3):
            a.e("v_add_u32 v%d, s%d, v%d" % (dst + tau, S_QW + tau, dst + 2))

    def addr_rest():
        a.e("v_lshrrev_b32 v%d, 4, v0" % V_X1)
        a.e("v_and_b32 v%d, 15, v0" % V_X2)
        tr_addr(V_TRA, WLOC[0], V_X3, V_X4)
        for tau in range(3):
            a.e("v_add_u32 v%d, 0x%x, v%d" % (V_TRB + tau, WLOC[2] - WLOC[0], V_TRA + tau))
        a.e("v_lshrrev_b32 v%d, 1, v%d" % (V_X3, V_X2))
        a.e("v_xor_b32 v%d, v%d, v%d" % (V_X3, V_X3, V_X1))
        a.e("v_lshlrev_b32 v%d, 4, v%d" % (V_X3, V_X3))
        a.e("v_lshl_add_u32 v%d, v%d, 7, v%d" % (x0, V_X2, V_X3))
        a.e("v_xor_b32 v%d, 64, v%d" % (x1, x0))
        for k in range(2):
            a.e("v_add_u32 v%d, 0x%x, v%d" % (V_XB + k, XLOC[1], V_XA + k))
        a.e("v_add_u32 v%d, s%d, v%d" % (V_KR0, S_M0K, x0))
        a.e("v_add_u32 v%d, s%d, v%d" % (V_KR1, S_M0K, x1))
        a.e("v_bfe_u32 v%d, v0, 5, 1" % V_X2)
        a.e("v_bfe_u32 v%d, v0, 3, 2" % V_X3)
        a.e("v_lshl_add_u32 v%d, v%d, 3, v%d" % (V_X2, V_X2, V_X3))
        a.e("v_mul_u32_u24 v%d, 0x180, v%d" % (V_X2, V_X2))
        a.e("s_mul_i32 s%d, s%d, 24576" % (S_T3, S_WAVE))
        a.e("v_add_u32 v%d, s%d, v%d" % (V_X2, S_T3, V_X2))
        a.e("v_and_b32 v%d, 7, v0" % V_X4)
        a.e("v_xor_b32 v%d, v%d, v%d" % (V_X3, V_X4, V_X1))
        a.e("v_lshlrev_b32 v%d, 4, v%d" % (V_X3, V_X3))
        a.e("v_add_u32 v%d, v%d, v%d" % (V_VK0, V_X2, V_X3))
        a.e("v_xor_b32 v%d, 64, v%d" % (V_X3, V_X3))
        a.e("v_add_u32 v%d, v%d, v%d" % (V_VK1, V_X2, V_X3))
        a.e("v_add_u32 v%d, 0x%x, v%d" % (V_VK1, 16 * 384, V_VK1))
        qw_addr(V_QW)

    a.lines.append(".globl %s\n.p2align 8\n.type %s,@function" % (kn, kn))
    a.label(kn)
    a.e("s_cmp_ge_u32 s2, 256")
    a.e("s_cbranch_scc1 LA_end")
    a.e("s_and_b32 s%d, s2, 7" % S_T0)
    a.e("s_lshr_b32 s%d, s%d, 2" % (S_P, S_T0))
    a.e("s_mul_i32 s%d, s%d, 40" % (S_T2, S_P))
    a.e("s_add_u32 s%d, s0, s%d" % (S_T0 + 1, S_T2))
    a.e("s_addc_u32 s%d, s1, 0" % (S_T0 + 2))
    a.e("s_load_dwordx8 s[%d:%d], s[%d:%d], 0" % (S_PTR, S_PTR + 7, S_T0 + 1, S_T0 + 2))
    a.e("s_load_dwordx2 s[%d:%d], s[0:1], 96" % (S_WSP, S_WSP + 1))
    a.e("s_load_dwordx2 s[%d:%d], s[%d:%d], 32" % (S_TM, S_TM + 1, S_T0 + 1, S_T0 + 2))
    if MG:
        a.e("s_load_dwordx2 s[92:93], s[0:1], 88")
        a.e("s_mov_b32 s88, s0")
        a.e("s_mov_b32 s89, s1")
        a.e("s_mov_b32 s90, s2")
    a.e("s_lshr_b32 s%d, s2, 3" % S_T3)
    a.e("s_and_b32 s%d, s%d, 3" % (S_H, S_T0))
    a.e("s_lshl_b32 s%d, s%d, 3" % (S_H, S_H))
    a.e("s_and_b32 s%d, s%d, 7" % (S_HI, S_T3))
    a.e("s_add_u32 s%d, s%d, s%d" % (S_H, S_H, S_HI))
    a.e("s_lshr_b32 s%d, s%d, 3" % (S_B, S_T3))
    a.e("s_and_b32 s%d, s%d, 1" % (S_TYPE, S_HI))
    a.e("s_cselect_b32 s%d, %d, %d" % (S_TYPE, opt.get("tb", 2), opt.get("ta", 0)))
    if "tt" in opt:
        a.e("s_lshl_b32 s%d, s%d, 2" % (S_T3, S_HI))
        a.e("s_lshr_b32 s%d, 0x%x, s%d" % (S_TYPE, int(str(opt["tt"]), 16), S_T3))
        a.e("s_and_b32 s%d, s%d, 3" % (S_TYPE, S_TYPE))
    if "type" in opt:
        a.e("s_mov_b32 s%d, %d" % (S_TYPE, opt["type"]))
    a.e("s_lshr_b32 s%d, s%d, 1" % (S_CH, S_HI))
    a.e("s_add_u32 s%d, s%d, s%d" % (S_CH, S_CH, S_B))
    a.e("s_and_b32 s%d, s%d, 3" % (S_CH, S_CH))
    a.e("s_mul_i32 s%d, s%d, 5" % (S_CH, S_CH))
    a.e("s_lshr_b32 s%d, s%d, 1" % (S_CH, S_CH))
    if opt.get("norot"):
        a.e("s_mov_b32 s%d, 0" % S_CH)
    a.e("s_mov_b32 s%d, 0" % S_TASK)
    a.e("v_lshrrev_b32 v%d, 6, v0" % V_TMP)
    a.e("v_and_b32 v0, 63, v0")
    a.e("v_readfirstlane_b32 s%d, v%d" % (S_WAVE, V_TMP))
    a.e("v_lshlrev_b32 v%d, 4, v0" % V_L16)
    a.e("s_mov_b32 s%d, 0x%08x" % (S_C, f32((192 ** -0.5) * math.log2(math.e))))
    a.e("s_and_b32 s%d, s%d, 3" % (S_WS, S_WAVE))
    a.e("s_lshr_b32 s%d, s%d, 2" % (S_GRP, S_WAVE))
    a.e("s_lshl_b32 s%d, s%d, 13" % (S_M0K, S_WAVE))
    a.e("s_add_u32 s%d, s%d, 0x%x" % (S_M0K, S_M0K, KST))
    a.e("s_lshl_b32 s%d, s%d, 10" % (S_M0W, S_WS))
    a.e("s_mul_i32 s%d, s%d, 4608" % (S_M0X, S_WS))
    for tau in range(3):
        a.e("s_mul_i32 s%d, s%d, 3" % (S_T3, S_WS))
        a.e("s_add_u32 s%d, s%d, %d" % (S_T3, S_T3, tau))
        a.e("s_and_b32 s%d, s%d, 3" % (S_DE + tau, S_T3))
        a.e("s_lshr_b32 s%d, s%d, 2" % (S_DC + tau, S_T3))
        a.e("s_lshl_b32 s%d, s%d, 12" % (S_DC + tau, S_DC + tau))
        a.e("s_lshr_b32 s%d, s%d, 1" % (S_TQ, S_T3))
        a.e("s_mul_i32 s%d, s%d, 9216" % (S_TQ, S_TQ))
        a.e("s_and_b32 s%d, s%d, 1" % (S_T3, S_T3))
        a.e("s_lshl_b32 s%d, s%d, 9" % (S_T3, S_T3))
        a.e("s_add_u32 s%d, s%d, s%d" % (S_QW + tau, S_T3, S_TQ))
    TW, TX = 16, 17
    a.e("s_mul_i32 s%d, s%d, 60" % (S_T3, S_WAVE))
    a.e("v_min_u32 v%d, 59, v0" % V_X1)
    a.e("v_add_u32 v%d, s%d, v%d" % (V_X1, S_T3, V_X1))
    a.e("v_mul_u32_u24 v%d, 0x2ab, v%d" % (V_X2, V_X1))
    a.e("v_lshrrev_b32 v%d, 11, v%d" % (V_X2, V_X2))
    a.e("v_mul_u32_u24 v%d, 3, v%d" % (V_X3, V_X2))
    a.e("v_sub_u32 v%d, v%d, v%d" % (V_X1, V_X1, V_X3))
    a.e("s_mul_i32 s%d, s%d, 160" % (S_T3, S_B))
    a.e("v_add_u32 v%d, s%d, v%d" % (V_X2, S_T3, V_X2))
    a.e("v_mul_u32_u24 v%d, 0x3000, v%d" % (TW, V_X2))
    a.e("v_lshl_add_u32 v%d, v%d, 7, v%d" % (TW, V_X1, TW))
    a.e("s_lshr_b32 s%d, s%d, 1" % (S_T3, S_HI))
    a.e("s_mul_i32 s%d, s%d, 360" % (S_T3, S_T3))
    a.e("s_mul_i32 s%d, s%d, 45" % (S_TQ, S_WAVE))
    a.e("s_add_u32 s%d, s%d, s%d" % (S_T3, S_T3, S_TQ))
    a.e("v_min_u32 v%d, 44, v0" % V_X1)
    a.e("v_add_u32 v%d, s%d, v%d" % (V_X1, S_T3, V_X1))
    a.e("v_lshlrev_b32 v%d, 7, v%d" % (TX, V_X1))
    addr_dma()
    a.e("s_waitcnt lgkmcnt(0)")
    px, pk, pv, pw = S_PTR, S_PTR + 2, S_PTR + 4, S_PTR + 6
    a.e("s_mul_i32 s%d, s%d, 184320" % (S_T3, S_B))
    a.e("s_add_u32 s%d, s%d, s%d" % (S_X, px, S_T3))
    a.e("s_addc_u32 s%d, s%d, 0" % (S_X + 1, px + 1))
    a.e("s_mov_b32 s%d, 184320" % (S_X + 2))
    a.e("s_mov_b32 s%d, 0x20000" % (S_X + 3))
    a.e("s_mul_i32 s%d, s%d, 384" % (S_T3, S_H))
    a.e("s_add_u32 s%d, s%d, s%d" % (S_W, pw, S_T3))
    a.e("s_addc_u32 s%d, s%d, 0" % (S_W + 1, pw + 1))
    a.e("s_sub_u32 s%d, 7864320, s%d" % (S_W + 2, S_T3))
    a.e("s_mov_b32 s%d, 0x20000" % (S_W + 3))
    if opt.get("touch", 1):
        sm = opt.get("smode", 0)
        lt = a.newlabel("LA_tt")
        if sm:
            a.e("s_cmp_eq_u32 s%d, 0" % S_TYPE)
            a.e("s_cbranch_scc0 %s" % lt)
        a.e("buffer_load_dword v%d, v%d, s[%d:%d], 0 offen" % (TX, TX, S_X, S_X + 3))
        a.e("buffer_load_dword v%d, v%d, s[%d:%d], 0 offen" % (18, TW, S_W, S_W + 3))
        if sm == 1:
            a.e("buffer_load_dword v%d, v%d, s[%d:%d], 0 offen offset:384" % (19, TW, S_W, S_W + 3))
        a.label(lt)
    a.e("s_lshl_b32 s%d, s%d, 5" % (S_T3, S_B))
    a.e("s_add_u32 s%d, s%d, s%d" % (S_T3, S_T3, S_H))
    a.e("s_lshl_b32 s%d, s%d, 8" % (S_TQ, S_P))
    a.e("s_add_u32 s%d, s%d, s%d" % (S_TQ, S_TQ, S_T3))
    a.e("s_mul_i32 s%d, s%d, %d" % (S_TQ, S_TQ, O_TASK))
    a.e("s_add_u32 s%d, s%d, s%d" % (S_O, S_WSP, S_TQ))
    a.e("s_addc_u32 s%d, s%d, 0" % (S_O + 1, S_WSP + 1))
    a.e("s_mov_b32 s%d, %d" % (S_O + 2, O_TASK))
    a.e("s_mov_b32 s%d, 0x20000" % (S_O + 3))
    a.e("s_mul_i32 s%d, s%d, 196608" % (S_T3, S_T3))
    for srd, p in ((S_K, pk), (S_V, pv)):
        a.e("s_add_u32 s%d, s%d, s%d" % (srd, p, S_T3))
        a.e("s_addc_u32 s%d, s%d, 0" % (srd + 1, p + 1))
        a.e("s_mov_b32 s%d, 196608" % (srd + 2))
        a.e("s_mov_b32 s%d, 0x20000" % (srd + 3))
    a.e("s_add_u32 s%d, s%d, %d" % (S_XN, S_X, 4 * 184320))
    a.e("s_addc_u32 s%d, s%d, 0" % (S_XN + 1, S_X + 1))
    a.e("s_mov_b32 s%d, 184320" % (S_XN + 2))
    a.e("s_mov_b32 s%d, 0x20000" % (S_XN + 3))
    if MG:
        a.e("s_mov_b32 s94, 256")
        a.e("s_mov_b32 s95, 0x20000")
        a.e("s_lshl_b32 s91, s%d, 3" % S_P)
        a.e("s_add_u32 s91, s91, s%d" % S_B)
        a.e("s_lshl_b32 s91, s91, 2")
        a.e("s_lshr_b32 s%d, s%d, 3" % (S_T3, S_H))
        a.e("s_add_u32 s91, s91, s%d" % S_T3)
        a.e("s_lshl_b32 s91, s91, 2")
    else:
        lz = a.newlabel("LA_z")
        a.e("s_cmp_lt_u32 s2, 64")
        a.e("s_cbranch_scc0 %s" % lz)
        a.e("s_cmp_eq_u32 s%d, 0" % S_WAVE)
        a.e("s_cbranch_scc0 %s" % lz)
        a.e("s_add_u32 s%d, s%d, 0x3f00000" % (S_WO, S_WSP))
        a.e("s_addc_u32 s%d, s%d, 0" % (S_WO + 1, S_WSP + 1))
        a.e("s_mov_b32 s%d, 8192" % (S_WO + 2))
        a.e("s_mov_b32 s%d, 0x20000" % (S_WO + 3))
        a.e("s_lshl_b32 s%d, s2, 7" % S_T3)
        a.e("v_mov_b32 v%d, 0" % V_TMP)
        a.e("buffer_store_dword v%d, off, s[%d:%d], s%d" % (V_TMP, S_WO, S_WO + 3, S_T3))
        a.label(lz)
    a.e("s_lshr_b32 s%d, s%d, 3" % (S_T3, S_H))
    a.e("s_lshl_b32 s%d, s%d, 5" % (S_T3, S_T3))
    a.e("s_lshr_b32 s%d, s2, 3" % S_TQ)
    a.e("s_add_u32 s%d, s%d, s%d" % (S_T3, S_T3, S_TQ))
    a.e("s_mul_i32 s%d, s%d, 61440" % (S_T3, S_T3))
    a.e("s_add_u32 s%d, s%d, s%d" % (S_WO, S_TM, S_T3))
    a.e("s_addc_u32 s%d, s%d, 0" % (S_WO + 1, S_TM + 1))
    a.e("s_mov_b32 s%d, 61440" % (S_WO + 2))
    if opt.get("wo2"):
        a.e("s_and_b32 s%d, s%d, 1" % (S_T3, S_HI))
        a.e("s_cselect_b32 s%d, 0, 122880" % (S_WO + 2))
    a.e("s_mov_b32 s%d, 0x20000" % (S_WO + 3))
    a.e("s_lshl_b32 s%d, s%d, 7" % (S_KX, S_CH))
    a.e("s_mul_i32 s%d, s%d, 0xc0000" % (S_KW, S_CH))
    if dbg:
        a.e("s_lshl_b32 s%d, s2, 3" % S_T3)
        a.e("s_add_u32 s%d, s%d, s%d" % (S_T3, S_T3, S_WAVE))
        a.e("s_lshl_b32 s%d, s%d, 7" % (S_T3, S_T3))
        a.e("s_add_u32 s%d, s%d, 0x4000000" % (S_T3, S_T3))
        a.e("s_add_u32 s%d, s%d, s%d" % (S_DBG, S_WSP, S_T3))
        a.e("s_addc_u32 s%d, s%d, 0" % (S_DBG + 1, S_WSP + 1))
        a.e("s_mov_b32 s%d, 128" % (S_DBG + 2))
        a.e("s_mov_b32 s%d, 0x20000" % (S_DBG + 3))
    if opt.get("tlb"):
        l = a.newlabel("LA_tlb")
        a.e("s_cmp_eq_u32 s%d, 1" % S_WAVE)
        a.e("s_cbranch_scc0 %s" % l)
        a.e("v_mov_b32 v20, 0")
        a.e("v_mov_b32 v21, 0x%x" % (128 * 196608))
        a.e("v_mov_b32 v22, 0x%x" % (128 * O_TASK))
        a.e("s_mov_b64 exec, 1")
        a.e("global_load_dword v23, v20, s[%d:%d] nt" % (S_K, S_K + 1))
        a.e("global_load_dword v24, v20, s[%d:%d] nt" % (S_V, S_V + 1))
        a.e("global_load_dword v25, v21, s[%d:%d] nt" % (S_K, S_K + 1))
        a.e("global_load_dword v26, v21, s[%d:%d] nt" % (S_V, S_V + 1))
        a.e("global_load_dword v27, v20, s[%d:%d] nt" % (S_O, S_O + 1))
        a.e("global_load_dword v28, v22, s[%d:%d] nt" % (S_O, S_O + 1))
        a.e("global_load_dword v29, v20, s[%d:%d] nt" % (S_WO, S_WO + 1))
        a.e("s_mov_b64 exec, -1")
        a.label(l)
    for k, (sp, st) in enumerate(((S_PA, S_TA), (S_PB, S_TB))):
        a.e("s_lshl_b32 s%d, s%d, 1" % (S_T3, S_WAVE))
        a.e("s_add_u32 s%d, s%d, %d" % (S_T3, S_T3, k))
        a.e("s_mul_i32 s%d, s%d, 43" % (S_TQ, S_T3))
        a.e("s_lshr_b32 s%d, s%d, 7" % (S_TQ, S_TQ))
        a.e("s_mul_i32 s%d, s%d, 3" % (S_T2, S_TQ))
        a.e("s_sub_u32 s%d, s%d, s%d" % (S_T2, S_T3, S_T2))
        a.e("s_lshl_b32 s%d, s%d, 7" % (S_T2, S_T2))
        a.e("s_add_u32 s%d, s%d, 2" % (st, S_TQ))
        a.e("s_add_u32 s%d, s%d, 6" % (S_TQ, S_TQ))
        a.e("s_and_b32 s%d, s%d, 7" % (S_TQ, S_TQ))
        a.e("s_mul_i32 s%d, s%d, 24576" % (S_TQ, S_TQ))
        a.e("s_add_u32 s%d, s%d, s%d" % (sp, S_TQ, S_T2))
        a.e("s_cmp_ge_u32 s%d, 15" % S_T3)
        a.e("s_cselect_b32 s%d, 0x100000, s%d" % (sp, sp))
    addr_rest()
    dbgv = V_TMP if dbg else None
    NT = " nt" if opt.get("nt", True) else ""

    pairs = [(2 * ub + k, cg) for ub in range(2) for cg in range(3) for k in range(2)]

    def k_issue(p):
        kt, cg = pairs[p]
        ub, half = kt >> 1, kt & 1
        a.e("s_mov_b32 s%d, 0x%x" % (S_T3, ub * 12288 + half * 1536 + cg * 128))
        for hh in range(2):
            a.e("s_add_u32 m0, s%d, 0x%x" % (S_M0K, (p % KR) * 2048 + hh * 1024))
            a.e("s_nop 0")
            if not opt.get("nok"):
                a.e("buffer_load_dwordx4 v%d, s[%d:%d], s%d offen%s lds" % (
                    (V_VK0, V_VK1)[hh], S_K, S_K + 3, S_T3, NT), ("k", p))

    def k_take(p, lim=12):
        kt, cg = pairs[p]
        if not opt.get("nok"):
            a.e("s_waitcnt vmcnt(%d)" % a.vmn(("k", p)))
        a.e("ds_read_b128 %s, v%d offset:%d" % (vr(Kf(kt, 2 * cg), 4), V_KR0, (p % KR) * 2048))
        a.e("ds_read_b128 %s, v%d offset:%d" % (vr(Kf(kt, 2 * cg + 1), 4), V_KR1, (p % KR) * 2048))
        a.e("s_waitcnt lgkmcnt(0)")
        if p + KR < lim:
            k_issue(p + KR)

    def dma_chunk(grp, slot, tag):
        L = []
        if grp == 1:
            for n in range(5):
                g = ["s_add_u32 m0, s%d, 0x%x" % (S_M0X, XLOC[slot] + 1024 * n),
                     "s_add_u32 s%d, s%d, 0x%x" % (S_T3, S_KX, n * 10240)]
                if n == 4:
                    g.append("s_mov_b32 exec_hi, 0")
                if not opt.get("nox"):
                    g.append(("buffer_load_dwordx4 v%d, s[%d:%d], s%d offen lds" % (
                        (V_VX0, V_VX1)[n & 1], S_X, S_X + 3, S_T3), tag))
                if n == 4:
                    g.append("s_mov_b32 exec_hi, -1")
                L.append(g)
            L.append(["s_add_u32 s%d, s%d, 128" % (S_KX, S_KX),
                      "s_cmp_ge_u32 s%d, 1280" % S_KX,
                      "s_cselect_b32 s%d, 0, s%d" % (S_KX, S_KX)])
        else:
            for kh in range(2):
                for cg in range(3):
                    g = ["s_add_u32 m0, s%d, 0x%x" % (S_M0W, WLOC[slot] + kh * 12288 + 4096 * cg - 128 * cg),
                         "s_nop 0"]
                    if not opt.get("now"):
                        g.append(("buffer_load_dwordx4 v%d, s[%d:%d], s%d offen offset:%d lds" % (
                            V_VW, S_W, S_W + 3, S_KW, 128 * cg), tag))
                    L.append(g)
                L.append(["s_add_u32 s%d, s%d, 0x60000" % (S_KW, S_KW)])
            L.append(["s_cmp_ge_u32 s%d, 0x780000" % S_KW,
                      "s_cselect_b32 s%d, 0, s%d" % (S_KW, S_KW)])
        return L

    border = [4, 5, 6, 7, 0, 1, 2, 3]

    def vgoff(tile):
        return border[tile & 7] * 24576 + (tile >> 3) * 12288

    def v_dma_const(tile, slot):
        goff = vgoff(tile)
        L = []
        if opt.get("nov"):
            return L
        for cg in range(3):
            L.append(["s_add_u32 m0, s%d, 0x%x" % (S_M0W, VBASE + slot * VSLOT + 4096 * cg - 128 * cg),
                      "s_mov_b32 s%d, 0x%x" % (S_T3, goff),
                      ("buffer_load_dwordx4 v%d, s[%d:%d], s%d offen offset:%d%s lds" % (
                          V_VOFFV, S_V, S_V + 3, S_T3, 128 * cg, NT), ("v", tile))])
        return L

    def p1_reads(tiles, step):
        c, kh = step >> 1, step & 1
        fset = step & 1
        sl = c % NCH
        tb, to = (V_TRA, WLOC[sl] - WLOC[0]) if sl < 2 else (V_TRB, 0)
        xb, xo = (V_XA, 0) if sl == 0 else (V_XB, XLOC[sl] - XLOC[1])
        L = []
        for tau in range(3):
            d = V_A1 + fset * 12 + tau * 4
            L.append(["ds_read_b64_tr_b16 %s, v%d offset:%d" % (vr(d, 2), tb + tau, to + kh * 12288)])
            L.append(["ds_read_b64_tr_b16 %s, v%d offset:%d" % (vr(d + 2, 2), tb + tau, to + kh * 12288 + 512)])
        for j, t in enumerate(tiles):
            d = V_B1 + fset * 20 + j * 4
            L.append(["ds_read_b128 %s, v%d offset:%d" % (vr(d, 4), xb + kh, xo + t * 2048)])
        return L

    def p1_mfmas(tiles, fset, first=False):
        M = []
        for j, t in enumerate(tiles):
            for tau in range(3):
                acc = V_ACC1 + (j * 3 + tau) * 4
                M.append("v_mfma_f32_16x16x32_bf16 %s, %s, %s, %s" % (
                    vr(acc, 4), vr(V_A1 + fset * 12 + tau * 4, 4), vr(V_B1 + fset * 20 + j * 4, 4),
                    "0" if first else vr(acc, 4)))
        return M

    def vmwait(tag, extra=""):
        if tag in a.vm:
            a.e("s_waitcnt vmcnt(%d)%s" % (a.vmn(tag), extra))
        elif extra:
            a.e("s_waitcnt" + extra)

    stamp(a, 0, dbgv)
    if dbg:
        a.e("s_getreg_b32 s%d, hwreg(HW_REG_XCC_ID)" % S_T3)
        a.e("v_mov_b32 v%d, s%d" % (V_TMP, S_T3))
        a.lines.append("    buffer_store_dword v%d, off, s[%d:%d], 0 offset:60" % (V_TMP, S_DBG, S_DBG + 3))
        a.e("s_getreg_b32 s%d, hwreg(HW_REG_HW_ID)" % S_T3)
        a.e("s_nop 1")
        a.e("v_mov_b32 v%d, s%d" % (V_TMP, S_T3))
        a.lines.append("    buffer_store_dword v%d, off, s[%d:%d], 0 offset:56" % (V_TMP, S_DBG, S_DBG + 3))
        a.e("s_memrealtime s[%d:%d]" % (S_TM, S_TM + 1))
        a.e("s_waitcnt lgkmcnt(0)")
        a.e("v_mov_b32 v%d, s%d" % (V_TMP, S_TM))
        a.lines.append("    buffer_store_dword v%d, off, s[%d:%d], 0 offset:52" % (V_TMP, S_DBG, S_DBG + 3))
    S_VEM, S_VEO = S_VR, S_PR
    a.e("s_mul_i32 s%d, s%d, %d" % (S_VEM, S_GRP, VSLOT))
    a.e("s_add_u32 s%d, s%d, s%d" % (S_VEM, S_VEM, S_M0W))
    a.e("s_mul_i32 s%d, s%d, %d" % (S_VEO, S_GRP, vgoff(1) - vgoff(0)))
    a.e("s_add_u32 s%d, s%d, 0x%x" % (S_VEO, S_VEO, vgoff(0)))

    def v_early():
        for cg in range(3):
            a.e("s_add_u32 m0, s%d, 0x%x" % (S_VEM, VBASE + 4096 * cg - 128 * cg))
            a.e("s_nop 0")
            if not opt.get("nov"):
                a.e("buffer_load_dwordx4 v%d, s[%d:%d], s%d offen offset:%d%s lds" % (
                    V_VOFFV, S_V, S_V + 3, S_VEO, 128 * cg, NT), "ve")

    def o_stores(wait, pol=None):
        ONT = ("", " nt", " sc1", " sc0 sc1")[opt.get("ont", 3) if pol is None else pol]
        for k in range(7):
            if wait:
                a.e("s_waitcnt lgkmcnt(%d)" % (6 - k))
            a.e("s_mov_b32 s%d, %d" % (S_T3, k * 1024))
            a.e("buffer_store_dwordx4 %s, v%d, s[%d:%d], s%d offen%s" % (vr(160 + 4 * k, 4), V_YW, S_O, S_O + 3, S_T3, ONT))

    VP = opt.get("vp", 1)
    KE = opt.get("ke", 0)

    def k_pair(p0):
        l = a.newlabel("LA_kt")
        a.e("s_cmp_le_u32 s%d, %d" % (S_TYPE, p0 // 6))
        a.e("s_cbranch_scc0 %s" % l)
        k_take(p0)
        k_take(p0 + 1)
        if p0 == 6:
            v_early()
        if p0 == (8 if VP else 10):
            v_panel(0)
        a.label(l)
        if p0 == 10 and VP == 2:
            v_panel(1)

    def v_panel(k):
        if k == 0:
            a.e("s_mul_i32 s%d, s%d, 3072" % (S_T3, S_WS))
            a.e("v_subrev_u32 v%d, s%d, v%d" % (V_VK0, S_T3, V_VOFFV))
            a.e("s_and_b32 s%d, s%d, 1" % (S_T3, S_WS))
            a.e("s_lshl_b32 s%d, s%d, 6" % (S_T3, S_T3))
            a.e("v_xor_b32 v%d, s%d, v%d" % (V_VK0, S_T3, V_VK0))
            a.e("v_xor_b32 v%d, 64, v%d" % (V_VK1, V_VK0))
        for i in range(4):
            a.e("s_add_u32 m0, s%d, 0x%x" % (S_M0K, k * 4096 + i * 1024))
            a.e("s_add_u32 s%d, s%d, %d" % (S_T3, (S_PA, S_PB)[k], i * 3072))
            if not opt.get("nov"):
                a.e("buffer_load_dwordx4 v%d, s[%d:%d], s%d offen%s lds" % (
                    (V_VK0, V_VK1)[i & 1], S_V, S_V + 3, S_T3, NT), "p%d" % k)

    a.e("s_cmp_eq_u32 s%d, 0" % S_TYPE)
    a.e("s_cbranch_scc1 LA_p1")
    a.e("s_cmp_eq_u32 s%d, 1" % S_TYPE)
    a.e("s_cbranch_scc1 LA_kh")
    a.vm = []
    for p in range(KR):
        k_issue(p)
    for p in range(12):
        k_take(p)
    a.e("s_branch LA_kd")
    a.label("LA_kh")
    a.vm = []
    for p in range(KR):
        k_issue(p)
    for p in range(6):
        k_take(p, 6)
    a.label("LA_kd")
    a.e("s_barrier")
    stamp(a, 1, dbgv)
    a.label("LA_p1")
    a.e("s_cmp_eq_u32 s%d, 0" % S_GRP)
    a.e("s_cbranch_scc0 LA_p1_g1")
    for grp in (0, 1):
        a.vm = []
        tiles = [5, 6, 7, 8] if grp == 0 else [0, 1, 2, 3, 4]
        if grp == 1:
            a.label("LA_p1_g1")
        for c in range(2):
            a.grp(dma_chunk(grp, c, c))
        vmwait(0)
        a.label("LA_p1_re%d" % grp)
        a.e("s_barrier")
        a.grp(p1_reads(tiles, 0))
        pend = []
        kstep = opt.get("ks1", 15) if grp == 1 else opt.get("ks0", 17)

        def k_start():
            sv = list(a.vm)
            l, l1 = a.newlabel("LA_ks"), a.newlabel("LA_ks")
            a.e("s_cmp_eq_u32 s%d, 1" % S_TYPE)
            a.e("s_cbranch_scc0 %s" % l1)
            for p in range(6, 6 + KR):
                k_issue(p)
            a.label(l1)
            a.e("s_cmp_eq_u32 s%d, 0" % S_TYPE)
            a.e("s_cbranch_scc0 %s" % l)
            for p in range(KR):
                k_issue(p)
            a.label(l)
            a.vm = sv
        for step in range(20):
            c = step >> 1
            oth = []
            if step & 1:
                if c + 1 < 10 and step > kstep and not opt.get("nok"):
                    assert a.vmn(c + 1) == 0
                    l, l1 = a.newlabel("LA_kw"), a.newlabel("LA_kw")
                    a.e("s_cmp_eq_u32 s%d, 2" % S_TYPE)
                    a.e("s_cbranch_scc0 %s" % l)
                    a.e("s_waitcnt vmcnt(0)")
                    a.label(l)
                    a.e("s_waitcnt vmcnt(%d) lgkmcnt(0)" % (2 * KR))
                elif c + 1 < 10:
                    vmwait(c + 1, " lgkmcnt(0)")
                else:
                    a.e("s_waitcnt lgkmcnt(0)")
                a.e("s_barrier")
                if opt.get("dbg2"):
                    a.e("s_memtime s[%d:%d]" % (66 + 2 * c, 67 + 2 * c))
            else:
                a.e("s_waitcnt lgkmcnt(0)")
            if step + 1 < 20:
                oth = p1_reads(tiles, step + 1)
            dm = []
            if step == 0:
                dm = dma_chunk(grp, 2, 2)
            if (step & 1) and c + 3 < 10:
                full = dma_chunk(grp, c % NCH, c + 3)
                hsplit = 4 if grp == 0 else 3
                dm, pend = full[:hsplit], full[hsplit:]
            elif pend:
                dm, pend = pend, []
            mf = p1_mfmas(tiles, step & 1, step == 0)
            if opt.get("nomf"):
                mf = ["s_nop 0"] * len(mf)
            if opt.get("nord"):
                oth = []
            nm = len(mf)
            ri = di = 0
            for i, m in enumerate(mf):
                a.e(m)
                k = -(-(len(oth) - ri) // (nm - i))
                for _ in range(k):
                    a.g1(oth[ri])
                    ri += 1
                if di < len(dm) and (i + 1) * len(dm) >= (di + 1) * nm - nm // 2:
                    a.g1(dm[di])
                    di += 1
            while di < len(dm):
                a.g1(dm[di])
                di += 1
            if step == kstep:
                k_start()
        if opt.get("touch", 2) == 1:
            l = a.newlabel("LA_tx")
            a.e("s_cmp_eq_u32 s%d, 0" % S_TASK)
            a.e("s_cbranch_scc0 %s" % l)
            a.e("s_lshr_b32 s%d, s%d, 1" % (S_T3, S_HI))
            a.e("s_mul_i32 s%d, s%d, 360" % (S_T3, S_T3))
            a.e("s_mul_i32 s%d, s%d, 45" % (S_TQ, S_WAVE))
            a.e("s_add_u32 s%d, s%d, s%d" % (S_T3, S_T3, S_TQ))
            a.e("v_min_u32 v%d, 44, v0" % V_X1)
            a.e("v_add_u32 v%d, s%d, v%d" % (V_X1, S_T3, V_X1))
            a.e("v_lshlrev_b32 v%d, 7, v%d" % (V_X1, V_X1))
            a.e("buffer_load_dword v%d, v%d, s[%d:%d], 0 offen" % (V_TMP, V_X1, S_XN, S_XN + 3))
            a.label(l)
        if opt.get("late", 0):
            l = a.newlabel("LA_lo")
            a.e("s_cmp_eq_u32 s%d, 0" % S_TASK)
            a.e("s_cbranch_scc1 %s" % l)
            o_stores(False)
            a.e("s_add_u32 s%d, s%d, %d" % (S_O, S_O, 128 * O_TASK))
            a.e("s_addc_u32 s%d, s%d, 0" % (S_O + 1, S_O + 1))
            a.label(l)
        if kstep >= 20:
            k_start()
        a.vm = [("k", p) for p in range(KR) for _ in range(2)]
        if opt.get("nok"):
            a.vm = []
        if KE:
            k_pair(0)
        a.e("s_nop 7")
        for j, t in enumerate(tiles):
            for tau in range(3):
                acc = V_ACC1 + (j * 3 + tau) * 4
                a.e("v_cvt_pk_bf16_f32 v%d, v%d, v%d" % (acc, acc, acc + 1))
                a.e("v_cvt_pk_bf16_f32 v%d, v%d, v%d" % (acc + 1, acc + 2, acc + 3))
                a.e("ds_write_b64 v%d, %s offset:%d" % (V_QW + tau, vr(acc, 2), t * 1024))
        a.e("s_waitcnt lgkmcnt(0)")
        if grp == 0:
            a.e("s_branch LA_p1_done")
    a.label("LA_p1_done")
    stamp(a, 2, dbgv)
    if opt.get("dbg2"):
        for c in range(10):
            a.e("v_mov_b32 v%d, s%d" % (V_TMP, 66 + 2 * c))
            a.lines.append("    buffer_store_dword v%d, off, s[%d:%d], 0 offset:%d" % (V_TMP, S_DBG, S_DBG + 3, 64 + 4 * c))
    a.label("LA_p2_re")
    a.e("s_barrier")
    if MG:
        l = a.newlabel("LA_sg")
        a.e("s_sub_u32 s%d, s%d, 1" % (S_T3, S_TASK))
        a.e("s_or_b32 s%d, s%d, s%d" % (S_T3, S_T3, S_WAVE))
        a.e("s_cbranch_scc1 %s" % l)
        a.e("v_mov_b32 v%d, 1" % V_TMP)
        a.e("s_mov_b64 exec, 1")
        a.lines.append("    buffer_atomic_add v%d, off, s[92:95], s91 sc1" % V_TMP)
        a.e("s_mov_b64 exec, -1")
        a.label(l)
    stamp(a, 3, dbgv)
    vm_save = list(a.vm)
    a.e("s_cmp_eq_u32 s%d, 2" % S_TYPE)
    a.e("s_cbranch_scc0 LA_p2_go")
    v_early()
    v_panel(0)
    a.label("LA_p2_go")
    a.vm = vm_save
    seq = [(ub, s, t) for ub in range(2) for s in range(6) for t in range(9)]
    QB = ([88, 92, 96, 100, 104, 108], [188, 192, 196, 200, 4, 8])
    PD = 4

    def qbuf(i):
        return QB[seq[i][0]][i % 6]

    def qread(i):
        ub, s, t = seq[i]
        return "ds_read_b128 %s, v%d offset:%d" % (vr(qbuf(i), 4), V_L16, (s * 9 + t) * 1024)

    def blk(ub, t):
        return [S(kt, t) + r for kt in (2 * ub, 2 * ub + 1) for r in range(4)]

    def exp_stream(ub, t, tmp, first):
        v = blk(ub, t)
        L = []
        for x in v:
            L.append("v_fma_f32 v%d, v%d, s%d, -v%d" % (x, x, S_C, V_MC + t))
        for x in v:
            L.append("v_exp_f32 v%d, v%d" % (x, x))
        return L

    va = []
    for t in range(9):
        v = blk(0, t)
        m = V_MC + t
        va.append("v_max3_f32 v%d, v%d, v%d, v%d" % (m, v[0], v[1], v[2]))
        va.append("v_max3_f32 v%d, v%d, v%d, v%d" % (V_RT, v[3], v[4], v[5]))
        va.append("v_max3_f32 v%d, v%d, v%d, v%d" % (m, m, v[6], v[7]))
        va.append("v_max_f32 v%d, v%d, v%d" % (m, m, V_RT))
        va.append("v_mul_f32 v%d, s%d, v%d" % (m, S_C, m))
        va += exp_stream(0, t, V_RT, True)
    vai = 0
    for i in range(PD):
        a.e(qread(i))
    n = len(seq)
    PP = opt.get("pp", 1)
    nva1 = opt.get("nva1", 8)
    per_tile = len(va) // 9
    if PP:
        a.e("s_setprio 2")
    for i, (ub, s, t) in enumerate(seq):
        if PP and i == 54:
            a.e("s_setprio 0")
            a.e("s_nop 4")
            for ins in va[:nva1 * per_tile]:
                a.e(ins)
            vai = nva1 * per_tile
            a.e("s_setprio 2")
        if t == 0 and s % 2 == 0 and opt.get("dbg4"):
            a.e("s_memtime s[%d:%d]" % (66 + 4 * (ub * 3 + s // 2), 67 + 4 * (ub * 3 + s // 2)))
        p0 = ub * 6 + s + 2 * KE
        if t == 0 and s % 2 == 0 and p0 < 12:
            k_pair(p0)
            if opt.get("dbg4"):
                a.e("s_memtime s[%d:%d]" % (68 + 4 * (ub * 3 + s // 2), 69 + 4 * (ub * 3 + s // 2)))
                a.e("s_waitcnt lgkmcnt(0)")
        if i + PD < n:
            a.e(qread(i + PD))
            a.e("s_waitcnt lgkmcnt(%d)" % PD)
        else:
            a.e("s_waitcnt lgkmcnt(%d)" % (n - 1 - i))
        for k in range(2):
            kt = 2 * ub + k
            cc = "0" if s == 0 else vr(S(kt, t), 4)
            a.e("v_mfma_f32_16x16x32_bf16 %s, %s, %s, %s" % (
                vr(S(kt, t), 4), vr(Kf(kt, s), 4), vr(qbuf(i), 4), cc))
            if not PP and ub == 1 and i >= 54 + 3:
                rem = 2 * (n - i) - k
                cnt = -(-(len(va) - vai) // rem)
                for _ in range(cnt):
                    a.e(va[vai])
                    vai += 1
    if VP == 3:
        v_panel(1)
    if PP:
        a.e("s_setprio 0")
        for ins in va[vai:]:
            a.e(ins)
        vai = len(va)
    assert vai == len(va)
    if VP < 2:
        v_panel(1)
    stamp(a, 4, dbgv)
    if opt.get("dbg4"):
        for c in range(12):
            a.e("v_mov_b32 v%d, s%d" % (V_TMP, 66 + 2 * c))
            a.lines.append("    buffer_store_dword v%d, off, s[%d:%d], 0 offset:%d" % (V_TMP, S_DBG, S_DBG + 3, 64 + 4 * c))
    MB = V_RT + 60
    a.e("v_and_b32 v%d, 15, v0" % V_Y)
    a.e("v_mul_u32_u24 v%d, 48, v%d" % (V_Y, V_Y))
    a.e("s_lshl_b32 s%d, s%d, 2" % (S_T3, S_WAVE))
    a.e("v_add_u32 v%d, s%d, v%d" % (V_YW, S_T3, V_Y))
    a.e("s_nop 4")
    for stp in range(5):
        for t in range(9):
            v = blk(1, t)
            m = MB + t
            if stp == 0:
                a.e("v_max3_f32 v%d, v%d, v%d, v%d" % (m, v[0], v[1], v[2]))
            elif stp < 3:
                a.e("v_max3_f32 v%d, v%d, v%d, v%d" % (m, m, v[1 + 2 * stp], v[2 + 2 * stp]))
            elif stp == 3:
                a.e("v_max_f32 v%d, v%d, v%d" % (m, m, v[7]))
            else:
                a.e("v_mul_f32 v%d, s%d, v%d" % (m, S_C, m))
    for t in range(9):
        a.e("v_max_f32 v%d, v%d, v%d" % (MB + t, MB + t, V_MC + t))
    xlane_reduce(a, [MB + t for t in range(9)], [V_RT + t for t in range(9)], "v_max_f32")
    a.e("s_mov_b64 exec, 0xffff")
    for t in range(9):
        a.e("ds_write_b32 v%d, v%d offset:%d" % (V_YW, MB + t, MAXB + t * 768))
    a.e("s_mov_b64 exec, -1")
    a.e("s_waitcnt lgkmcnt(0)")
    a.e("s_barrier")
    RT = V_RT
    for t in range(9):
        a.e("ds_read_b128 %s, v%d offset:%d" % (vr(RT + t * 8, 4), V_Y, MAXB + t * 768))
        a.e("ds_read_b128 %s, v%d offset:%d" % (vr(RT + t * 8 + 4, 4), V_Y, MAXB + t * 768 + 16))
    tr_addr(V_TVL, VBASE, V_PB1, V_PW)
    a.e("v_add_u32 v%d, 0x%x, v%d" % (V_PB1, 4 * PSLOT, V_L16))
    a.e("s_mul_i32 s%d, s%d, %d" % (S_T3, S_WAVE, PSLOT))
    a.e("v_add_u32 v%d, s%d, v%d" % (V_PW, S_T3, V_L16))
    a.e("s_waitcnt lgkmcnt(0)")
    a.e("s_barrier")
    for t in range(9):
        b = RT + t * 8
        a.e("v_max3_f32 v%d, v%d, v%d, v%d" % (b, b, b + 1, b + 2))
        a.e("v_max3_f32 v%d, v%d, v%d, v%d" % (b + 3, b + 3, b + 4, b + 5))
        a.e("v_max3_f32 v%d, v%d, v%d, v%d" % (b, b, b + 6, b + 7))
    for t in range(9):
        b = RT + t * 8
        a.e("v_max_f32 v%d, v%d, v%d" % (b, b, b + 3))
    for t in range(9):
        b = RT + t * 8
        a.e("v_sub_f32 v%d, v%d, v%d" % (b + 2, V_MC + t, b))
    for t in range(9):
        b = RT + t * 8
        a.e("v_exp_f32 v%d, v%d" % (b + 2, b + 2))
        a.e("v_mov_b32 v%d, v%d" % (V_MC + t, b))
    for k in range(4):
        a.e("v_mov_b32 v%d, 0x3f803f80" % (V_ONE + k))
    for t in range(9):
        b = RT + t * 8
        v = blk(0, t)
        for k in range(4):
            a.e("v_pk_mul_f32 %s, %s, %s op_sel_hi:[1,0]" % (vr(v[2 * k], 2), vr(v[2 * k], 2), vr(b + 2, 2)))
        d = S(0, t)
        for k in range(4):
            a.e("v_cvt_pk_bf16_f32 v%d, v%d, v%d" % (d + k, v[2 * k], v[2 * k + 1]))
        a.e("ds_write_b128 v%d, %s offset:%d" % (V_PW, vr(d, 4), t * 1024))
        if t >= 1:
            a.e("v_mfma_f32_16x16x32_bf16 %s, %s, %s, 0" % (vr(S(1, t - 1), 4), vr(V_ONE, 4), vr(S(0, t - 1), 4)))
        if t >= 2:
            a.e("v_mov_b32 v%d, v%d" % (V_SUM + t - 2, S(1, t - 2)))
    a.e("s_nop 0")
    a.e("v_mfma_f32_16x16x32_bf16 %s, %s, %s, 0" % (vr(S(1, 8), 4), vr(V_ONE, 4), vr(S(0, 8), 4)))
    a.e("s_nop 7")
    a.e("v_mov_b32 v%d, v%d" % (V_SUM + 7, S(1, 7)))
    a.e("v_mov_b32 v%d, v%d" % (V_SUM + 8, S(1, 8)))
    for tau in range(3):
        a.e("v_add_u32 v%d, 0x%x, v%d" % (V_TVH + tau, 4 * VSLOT, V_TVL + tau))
    stamp(a, 5, dbgv)
    a.e("s_cmp_eq_u32 s%d, 0" % S_GRP)
    a.e("s_cbranch_scc0 LA_p3_g1")

    def p3_reads(tiles, step):
        fset = step & 1
        vs = step % NV
        tb, vo = (V_TVL, vs * VSLOT) if vs < 4 else (V_TVH, (vs - 4) * VSLOT)
        ps = border[step & 7]
        pb, po = (V_PB0, ps * PSLOT) if ps < 4 else (V_PB1, (ps - 4) * PSLOT)
        L = []
        for tau in range(3):
            d = V_A3[fset] + tau * 4
            L.append(["ds_read_b64_tr_b16 %s, v%d offset:%d" % (vr(d, 2), tb + tau, vo)])
            L.append(["ds_read_b64_tr_b16 %s, v%d offset:%d" % (vr(d + 2, 2), tb + tau, vo + 512)])
        for j, t in enumerate(tiles):
            d = V_B3[fset] + j * 4
            L.append(["ds_read_b128 %s, v%d offset:%d" % (vr(d, 4), pb, po + t * 1024)])
        return L

    def p3_mfmas(tiles, step):
        fset = step & 1
        M = []
        for j, t in enumerate(tiles):
            for tau in range(3):
                acc = V_ACC3 + (j * 3 + tau) * 4
                M.append("v_mfma_f32_16x16x32_bf16 %s, %s, %s, %s" % (
                    vr(acc, 4), vr(V_A3[fset] + tau * 4, 4), vr(V_B3[fset] + j * 4, 4),
                    "0" if step == 0 else vr(acc, 4)))
        return M

    SUMB = 0
    SUMLOC = 147456
    OST = 2 * CH
    for grp in (0, 1):
        tiles = [0, 1, 2, 3, 4] if grp == 0 else [5, 6, 7, 8]
        vb = []
        for t in range(9):
            st = exp_stream(1, t, V_ET, False)
            v = blk(1, t)
            d = S(2, t)
            if t >= 1:
                st.insert(4, "v_mfma_f32_16x16x32_bf16 %s, %s, %s, 0" % (vr(S(3, t - 1), 4), vr(V_ONE, 4), vr(S(2, t - 1), 4)))
            if t >= 2:
                st.insert(2, "v_add_f32 v%d, v%d, v%d" % (V_SUM + t - 2, V_SUM + t - 2, S(3, t - 2)))
            vb += st
            for k in range(4):
                vb.append("v_cvt_pk_bf16_f32 v%d, v%d, v%d" % (d + k, v[2 * k], v[2 * k + 1]))
        c0b, c0e = opt.get("c0b", 0), opt.get("c0e", 9)
        cbeg, cend = (c0b, c0e) if grp == 0 else (0, 6)
        if grp == 0:
            wsteps = {7: [0, 1], 8: [2, 3, 4], 9: [5, 6], 10: [7, 8]}
        else:
            wsteps = {3: [0, 1], 4: [2, 3, 4], 5: [5, 6], 6: [7, 8]}
        xl = ["v_mfma_f32_16x16x32_bf16 %s, %s, %s, 0" % (vr(S(3, 8), 4), vr(V_ONE, 4), vr(S(2, 8), 4)),
              "v_add_f32 v%d, v%d, v%d" % (V_SUM + 7, V_SUM + 7, S(3, 7))]
        xl2 = ["v_add_f32 v%d, v%d, v%d" % (V_SUM + 8, V_SUM + 8, S(3, 8))]
        xstep = cend
        pubstep = 13
        if grp == 1:
            a.label("LA_p3_g1")
        a.vm = ["ve"] * 3 + ["p0"] * 4 + ["p1"] * 4
        if opt.get("nov"):
            a.vm = []
        vmwait("ve", " lgkmcnt(0)")
        a.e("s_barrier")
        a.grp(p3_reads(tiles, 0))
        vbi = 0
        for step in range(16):
            if 1 <= step <= 5 and not opt.get("nov"):
                la, lb = a.newlabel("LA_wa"), a.newlabel("LA_wb")
                a.e("s_cmp_le_u32 s%d, %d" % (S_TA, step + 1))
                a.e("s_cbranch_scc0 %s" % lb)
                a.e("s_waitcnt vmcnt(%d)" % a.vmn("p0"))
                a.e("s_cmp_le_u32 s%d, %d" % (S_TB, step + 1))
                a.e("s_cbranch_scc0 %s" % lb)
                a.e("s_waitcnt vmcnt(%d)" % a.vmn("p1"))
                a.label(lb)
                a.e("s_waitcnt lgkmcnt(0)")
            elif grp == 1 and 6 <= step < 15:
                vmwait(("v", step + 1), " lgkmcnt(0)")
            else:
                a.e("s_waitcnt lgkmcnt(0)")
            a.e("s_barrier")
            if opt.get("dbg3") and step < 15:
                a.e("s_memtime s[%d:%d]" % (66 + 2 * step, 67 + 2 * step))
            oth = p3_reads(tiles, step + 1) if step < 15 else []
            if grp == 1 and step + NV < 16:
                oth = oth + v_dma_const(step + NV, step % NV)
            valu = []
            if cbeg <= step < cend:
                k = -(-(len(vb) - vbi) // (cend - step))
                valu = vb[vbi:vbi + k]
                vbi += k
            if step == xstep:
                valu = xl
            if step == xstep + 1:
                valu = xl2
            if step == 12:
                valu = valu + ["v_add_u32 v%d, 0x%x, v%d" % (V_Y, SUMLOC, V_Y), "v_add_u32 v%d, 0x%x, v%d" % (V_YW, SUMLOC, V_YW)]
            if step == 14:
                tmpa = Asm()
                sa = a
                globals()["_a"] = None
                lines0 = len(a.lines)
                addr_dma(88, 89, 90, 91)
                valu = valu + [l.strip() for l in a.lines[lines0:]]
                del a.lines[lines0:]
            if step == 15:
                lnx = a.newlabel("LA_nx")
                a.e("s_cmp_eq_u32 s%d, 0" % S_TASK)
                a.e("s_cbranch_scc0 %s" % lnx)
                a.e("s_mov_b32 s%d, s%d" % (S_X, S_XN))
                a.e("s_mov_b32 s%d, s%d" % (S_X + 1, S_XN + 1))
                a.vm = []
                a.grp(dma_chunk(grp, 0, 0))
                a.label(lnx)
            tail = []
            if step in wsteps:
                for t in wsteps[step]:
                    tail.append(["ds_write_b128 v%d, %s offset:%d" % (V_PW, vr(S(2, t), 4), t * 1024)])
            if step == pubstep:
                tail.append(["s_mov_b64 exec, 0xffff"] +
                            ["ds_write_b32 v%d, v%d offset:%d" % (V_YW, V_SUM + t, SUMB + t * 768) for t in range(9)] +
                            ["s_mov_b64 exec, -1"])
            mf = p3_mfmas(tiles, step)
            if step == opt.get("tstep", 9) and opt.get("touch", 2) == 2:
                T1, TD = 46, (159 if MG else 47)
                l2, l3 = a.newlabel("LA_t2"), a.newlabel("LA_t3")
                a.e("s_cmp_eq_u32 s%d, 0" % S_TASK)
                a.e("s_cbranch_scc0 %s" % l2)
                a.e("s_lshr_b32 s%d, s%d, 1" % (S_T3, S_HI))
                a.e("s_mul_i32 s%d, s%d, 360" % (S_T3, S_T3))
                a.e("s_mul_i32 s%d, s%d, 45" % (S_TQ, S_WAVE))
                a.e("s_add_u32 s%d, s%d, s%d" % (S_T3, S_T3, S_TQ))
                a.e("v_min_u32 v%d, 44, v0" % T1)
                a.e("v_add_u32 v%d, s%d, v%d" % (T1, S_T3, T1))
                a.e("v_lshlrev_b32 v%d, 7, v%d" % (T1, T1))
                a.e("buffer_load_dword v%d, v%d, s[%d:%d], 0 offen" % (TD, T1, S_XN, S_XN + 3), "t")
                if not opt.get("woe"):
                    a.e("s_branch %s" % l3)
                    a.label(l2)
                a.e("s_mul_i32 s%d, s%d, 7680" % (S_T3, S_WAVE))
                a.e("v_min_u32 v%d, 59, v0" % T1)
                a.e("v_lshlrev_b32 v%d, 7, v%d" % (T1, T1))
                a.lines.append("    buffer_load_dword v%d, v%d, s[%d:%d], s%d offen" % (TD, T1, S_WO, S_WO + 3, S_T3))
                if opt.get("wo2"):
                    a.e("s_add_u32 s%d, s%d, 61440" % (S_T3, S_T3))
                    a.lines.append("    buffer_load_dword v%d, v%d, s[%d:%d], s%d offen" % (TD, T1, S_WO, S_WO + 3, S_T3))
                if opt.get("woe"):
                    a.e("s_branch %s" % l3)
                    a.label(l2)
                    a.lines.append("    buffer_load_dword v%d, off, s[%d:%d], 0" % (TD, S_WO, S_WO + 3))
                a.label(l3)

            def cost(ins):
                return 2 if ins.startswith("v_exp") else 1

            def take(lst, slots):
                k = c = 0
                while k < len(lst) and c + cost(lst[k]) <= slots:
                    c += cost(lst[k])
                    k += 1
                return lst[:k], lst[k:]

            def mixed(mf, mem, valu):
                nm = len(mf)
                mi = 0
                for i, m in enumerate(mf):
                    a.e(m)
                    k = -(-(len(mem) - mi) // (nm - i))
                    for _ in range(k):
                        a.g1(mem[mi])
                        mi += 1
                    now, valu = take(valu, 2)
                    for ins in now:
                        a.e(ins)
                return valu
            rd = [g for g in oth if g[0].startswith("ds_read")]
            dm = [g for g in oth if not g[0].startswith("ds_read")]
            mem = rd + tail + dm
            nm = len(mf)
            span = max(1, int(nm * opt.get("span", 70) / 100))
            mi = vi = 0
            for i, m in enumerate(mf):
                a.e(m)
                k = -(-(len(mem) - mi) // max(span - i, 1))
                for _ in range(k):
                    a.g1(mem[mi])
                    mi += 1
                k = -(-(len(valu) - vi) // (nm - i))
                for _ in range(k):
                    a.e(valu[vi])
                    vi += 1
        assert vbi == len(vb)
        stamp(a, 6, dbgv)
        if opt.get("dbg3"):
            for c in range(15):
                a.e("v_mov_b32 v%d, s%d" % (V_TMP, 66 + 2 * c))
                a.lines.append("    buffer_store_dword v%d, off, s[%d:%d], 0 offset:%d" % (V_TMP, S_DBG, S_DBG + 3, 64 + 4 * c))
        lnx = a.newlabel("LA_nx")
        a.e("s_cmp_eq_u32 s%d, 0" % S_TASK)
        a.e("s_cbranch_scc0 %s" % lnx)
        a.grp(dma_chunk(grp, 1, 1))
        a.label(lnx)
        ST = 88
        for j, t in enumerate(tiles):
            a.e("ds_read_b128 %s, v%d offset:%d" % (vr(ST + j * 8, 4), V_Y, SUMB + t * 768))
            a.e("ds_read_b128 %s, v%d offset:%d" % (vr(ST + j * 8 + 4, 4), V_Y, SUMB + t * 768 + 16))
        qw_addr(V_QW3)
        for tau in range(3):
            a.e("v_add_u32 v%d, 0x%x, v%d" % (V_QW3 + tau, OST, V_QW3 + tau))
        a.e("s_waitcnt lgkmcnt(0)")
        for j, t in enumerate(tiles):
            b = ST + j * 8
            for k in range(4):
                a.e("v_add_f32 v%d, v%d, v%d" % (b + k, b + k, b + k + 4))
        for j, t in enumerate(tiles):
            b = ST + j * 8
            a.e("v_add_f32 v%d, v%d, v%d" % (b, b, b + 1))
            a.e("v_add_f32 v%d, v%d, v%d" % (b + 2, b + 2, b + 3))
        for j, t in enumerate(tiles):
            b = ST + j * 8
            a.e("v_add_f32 v%d, v%d, v%d" % (b, b, b + 2))
        for j, t in enumerate(tiles):
            a.e("v_rcp_f32 v%d, v%d" % (ST + j * 8, ST + j * 8))
        a.e("s_nop 0")
        for j, t in enumerate(tiles):
            for tau in range(3):
                acc = V_ACC3 + (j * 3 + tau) * 4
                for r in range(2):
                    a.e("v_pk_mul_f32 %s, %s, %s op_sel_hi:[1,0]" % (
                        vr(acc + 2 * r, 2), vr(acc + 2 * r, 2), vr(ST + j * 8, 2)))
                a.e("v_cvt_pk_bf16_f32 v%d, v%d, v%d" % (acc, acc, acc + 1))
                a.e("v_cvt_pk_bf16_f32 v%d, v%d, v%d" % (acc + 1, acc + 2, acc + 3))
                a.e("ds_write_b64 v%d, %s offset:%d" % (V_QW3 + tau, vr(acc, 2), t * 1024))
        a.e("s_mul_i32 s%d, s%d, 7168" % (S_T3, S_WAVE))
        a.e("v_add_u32 v%d, s%d, v%d" % (V_YW, S_T3, V_L16))
        a.e("v_add_u32 v%d, 0x%x, v%d" % (V_Y, OST, V_YW))
        a.e("s_waitcnt lgkmcnt(0)")
        a.e("s_barrier")
        for k in range(7):
            a.e("ds_read_b128 %s, v%d offset:%d" % (vr(160 + 4 * k, 4), V_Y, k * 1024))
        pg = grp
        ls = a.newlabel("LA_st")
        if opt.get("late", 0):
            a.e("s_cmp_eq_u32 s%d, 0" % S_TASK)
            a.e("s_cbranch_scc1 %s" % ls)
        sv = list(a.vm)
        if "ont1" in opt:
            l1 = a.newlabel("LA_st")
            a.e("s_cmp_eq_u32 s%d, 0" % S_TASK)
            a.e("s_cbranch_scc0 %s" % l1)
            o_stores(True, opt["ont1"])
            a.e("s_branch %s" % ls)
            a.label(l1)
            a.vm = list(sv)
        o_stores(True)
        if opt.get("late", 0):
            a.vm = sv
        a.label(ls)
        stamp(a, 7, dbgv)
        if dbg:
            a.e("s_memrealtime s[%d:%d]" % (S_TM, S_TM + 1))
            a.e("s_waitcnt lgkmcnt(0)")
            a.e("v_mov_b32 v%d, s%d" % (V_TMP, S_TM))
            a.lines.append("    buffer_store_dword v%d, off, s[%d:%d], 0 offset:48" % (V_TMP, S_DBG, S_DBG + 3))
        a.e("s_cmp_eq_u32 s%d, 0" % S_TASK)
        a.e("s_cbranch_scc0 %s" % ("LB_entry" if MG else "LA_end"))
        a.e("s_mov_b32 s%d, 1" % S_TASK)
        if opt.get("t2", 0) == 0:
            a.e("s_mov_b32 s%d, 0" % S_TYPE)
        elif opt.get("t2") == 2:
            a.e("s_xor_b32 s%d, s%d, 2" % (S_TYPE, S_TYPE))
        for srd, adv in ((S_K, 128 * 196608), (S_V, 128 * 196608)) + (() if opt.get("late", 0) else ((S_O, 128 * O_TASK),)):
            a.e("s_add_u32 s%d, s%d, %d" % (srd, srd, adv))
            a.e("s_addc_u32 s%d, s%d, 0" % (srd + 1, srd + 1))
        if dbg:
            a.e("s_add_u32 s%d, s%d, %d" % (S_DBG, S_DBG, 256 * 8 * 128))
            a.e("s_addc_u32 s%d, s%d, 0" % (S_DBG + 1, S_DBG + 1))
            stamp(a, 0, dbgv)
            a.e("s_memrealtime s[%d:%d]" % (S_TM, S_TM + 1))
            a.e("s_waitcnt lgkmcnt(0)")
            a.e("v_mov_b32 v%d, s%d" % (V_TMP, S_TM))
            a.lines.append("    buffer_store_dword v%d, off, s[%d:%d], 0 offset:52" % (V_TMP, S_DBG, S_DBG + 3))
        addr_rest()
        if opt.get("t2", 0):
            l = a.newlabel("LA_k2")
            a.e("s_cmp_eq_u32 s%d, 2" % S_TYPE)
            a.e("s_cbranch_scc0 %s" % l)
            a.e("s_waitcnt lgkmcnt(0)")
            a.e("s_barrier")
            sv = list(a.vm)
            a.vm = []
            for p in range(KR):
                k_issue(p)
            for p in range(12):
                k_take(p)
            a.vm = sv
            a.label(l)
        vmwait(0, " lgkmcnt(0)")
        a.e("s_branch LA_p1_re%d" % pg)
    a.label("LA_end")
    a.e("s_endpgm")


def kd(name, vgpr, sgpr=102):
    return """.amdhsa_kernel %s
  .amdhsa_next_free_vgpr %d
  .amdhsa_next_free_sgpr %d
  .amdhsa_accum_offset %d
  .amdhsa_group_segment_fixed_size 0
  .amdhsa_kernarg_size 104
  .amdhsa_user_sgpr_count 2
  .amdhsa_user_sgpr_kernarg_segment_ptr 1
  .amdhsa_system_sgpr_workgroup_id_x 1
.end_amdhsa_kernel
""" % (name, vgpr, sgpr, (vgpr + 3) // 4 * 4)


def build(opt):
    a = Asm()
    hdr = open("cdna_kernels/%s.s.ref" % NAME).read().splitlines()
    hdr = [l for l in hdr if l.startswith(";") and "@launch" not in l and "Override" not in l and "grid=ceil" not in l]
    import genb
    launches = ["; @launch kernel=attn_kernel grid=(256,1,1) block=(512,1,1) lds=%d" % LDS_A,
                "; @launch kernel=oproj_kernel grid=(256,1,1) block=(512,1,1) lds=%d" % genb.LDS_B]
    if opt.get("merge", 0):
        launches = ["; @launch kernel=%s_kernel grid=(256,1,1) block=(512,1,1) lds=%d" % (NAME, LDS_A)]
        if opt.get("merge") == 2:
            launches = ["; @launch grid=(256,1,1) block=(512,1,1) lds=%d" % LDS_A]
    out = "\n".join(hdr + launches) + "\n"
    out += '.amdgcn_target "amdgcn-amd-amdhsa--gfx950"\n.text\n'
    gen_attn(a, opt)
    genb.gen_oproj(a, opt)
    out += a.text()
    out += '.section .rodata,"a"\n.p2align 6\n'
    if opt.get("merge", 0):
        return out + kd(NAME + "_kernel", 256)
    out += kd("attn_kernel", 256)
    out += ".p2align 6\n" + kd("oproj_kernel", genb.NVGPR_B)
    return out


if __name__ == "__main__":
    opt = {}
    outp = "k.s"
    for arg in sys.argv[1:]:
        if "=" in arg:
            k, v = arg.split("=")
            if k == "out":
                outp = v
            else:
                opt[k] = int(v)
    open(outp, "w").write(build(opt))
```

```python
import sys, math, struct

NAME = "concat_heads__mha_block_cached__mha_block_cached__near_ridge"


class Asm:
    def __init__(self):
        self.lines = []
        self.uid = 0
        self.vm = []

    def e(self, s, tag=None):
        self.lines.append("    " + s)
        if s.startswith("buffer_") or s.startswith("global_"):
            self.vm.append(tag)

    def grp(self, groups):
        for g in groups:
            self.g1(g)

    def g1(self, g):
        for ins in g:
            if isinstance(ins, tuple):
                self.e(ins[0], ins[1])
            else:
                self.e(ins)

    def vmn(self, tag):
        idx = [i for i, t in enumerate(self.vm) if t == tag]
        assert idx, tag
        n = len(self.vm) - 1 - idx[-1]
        assert n <= 63, n
        return n

    def c(self, s):
        self.lines.append("    ; " + s)

    def label(self, l):
        self.lines.append(l + ":")

    def newlabel(self, p="L"):
        self.uid += 1
        return "%s_%d" % (p, self.uid)

    def text(self):
        return "\n".join(self.lines) + "\n"


def vr(b, n=1):
    return "v%d" % b if n == 1 else "v[%d:%d]" % (b, b + n - 1)


def f32(x):
    return struct.unpack("<I", struct.pack("<f", x))[0]


def interleave(a, mfmas, others, lead=1, span=None):
    n = len(mfmas) if span is None else min(span, len(mfmas))
    m = len(others)
    oi = 0
    for i, mf in enumerate(mfmas):
        a.e(mf)
        if i + 1 >= lead and oi < m:
            rem = max(n - i, 1)
            k = -(-(m - oi) // rem)
            for _ in range(k):
                a.g1(others[oi])
                oi += 1
    while oi < m:
        a.g1(others[oi])
        oi += 1


CH = 43008
XLOC = (0, 67584, 86016)
WLOC = (18432, 43008, 104448)
NCH = 3
KST = 98304
KR = 4
S_PA, S_PB, S_TA, S_TB = 0, 1, 2, 3
VBASE = 73728
VSLOT = 12288
NV = 7
PSLOT = 9216
REDB = 159744
LDS_A = 163840
O_TASK = 55296
MAXB = 55296
SUMB = 159744 - 512

S_X, S_W, S_K, S_V, S_O = 4, 8, 12, 16, 20
S_WAVE, S_WS, S_GRP = 24, 25, 26
S_T0, S_T1, S_T2, S_T3 = 27, 28, 29, 30
S_KX, S_KW = 31, 32
S_M0X, S_M0W = 33, 34
S_TYPE = 35
S_C = 36
S_M0K = 37
S_VR, S_PR = 38, 39
S_CH = 43
S_PTR = 44
S_WSP = 52
S_P, S_B, S_H = 54, 55, 56
S_TQ = 57
S_HI, S_TASK = 58, 59
S_FLOW, S_PARK = 90, 91
S_Q2 = 92
S_QW = 40
S_DE, S_DC = 96, 99
S_WO = 48
S_XN = 44
S_DBG = 60
S_TM = 64

V_LANE, V_L16, V_VOFFV, V_TMP = 0, 1, 2, 3
V_QF = 4
V_S = 16
V_K = 160
V_ACC1, V_A1, V_B1 = 16, 76, 100
V_TRA, V_TRB, V_XA, V_XB = 140, 143, 146, 148
V_VX0, V_VX1, V_VW = 152, 153, 154
V_QW = 155
V_X1, V_X2, V_X3, V_X4 = 4, 5, 6, 7
V_VK0, V_VK1, V_KR0, V_KR1 = 12, 13, 14, 15
V_MC = 160
V_SUM = 169
V_RT = 180
V_ACC3 = 180
V_A3 = (240, 72)
V_B3 = (16, 52)
V_ET = 36
V_TVL, V_TVH = 4, 84
V_PB0, V_PB1 = 1, 8
V_PW = 9
V_Y, V_YW = 10, 11
V_QW3 = 12
V_ONE = 252


def S(kt, t):
    return V_S + (kt * 9 + t) * 4


def Kf(kt, s):
    return V_K + (kt * 6 + s) * 4


CLK = "s_memtime"


def stamp(a, idx, dbg):
    if not dbg:
        return
    a.e("%s s[%d:%d]" % (CLK, S_TM, S_TM + 1))
    a.e("s_waitcnt lgkmcnt(0)")
    a.e("v_mov_b32 v%d, s%d" % (dbg, S_TM))
    a.lines.append("    buffer_store_dword v%d, off, s[%d:%d], 0 offset:%d" % (dbg, S_DBG, S_DBG + 3, idx * 4))


def xlane_reduce(a, regs, tmps, op):
    for sw in ("v_permlane32_swap_b32", "v_permlane16_swap_b32"):
        for r, t in zip(regs, tmps):
            a.e("v_mov_b32 v%d, v%d" % (t, r))
        a.e("s_nop 1")
        for r, t in zip(regs, tmps):
            a.e("%s v%d, v%d" % (sw, r, t))
        a.e("s_nop 1")
        for r, t in zip(regs, tmps):
            a.e("%s v%d, v%d, v%d" % (op, r, r, t))


def gen_attn(a, opt):
    dbg = opt.get("dbg", False)
    global CLK
    if opt.get("rt"):
        CLK = "s_memrealtime"
    MG = opt.get("merge", 0)
    kn = NAME + "_kernel" if MG else "attn_kernel"
    x0, x1 = V_XA, V_XA + 1

    def tr_addr(dst, base, t1, t2):
        a.e("v_lshrrev_b32 v%d, 4, v0" % t1)
        a.e("v_bfe_u32 v%d, v0, 2, 2" % t2)
        a.e("v_lshl_add_u32 v%d, v%d, 3, v%d" % (t1, t1, t2))
        a.e("v_and_b32 v%d, 3, v0" % t2)
        a.e("v_lshlrev_b32 v%d, 3, v%d" % (t2, t2))
        a.e("v_lshl_add_u32 v%d, v%d, 7, v%d" % (t1, t1, t2))
        a.e("v_bfe_u32 v%d, v0, 3, 2" % t2)
        for tau in range(3):
            a.e("v_xor_b32 v%d, s%d, v%d" % (dst + tau, S_DE + tau, t2))
            a.e("v_lshl_add_u32 v%d, v%d, 5, v%d" % (dst + tau, dst + tau, t1))
            a.e("s_add_u32 s%d, s%d, 0x%x" % (S_T3, S_DC + tau, base))
            a.e("v_add_u32 v%d, s%d, v%d" % (dst + tau, S_T3, dst + tau))

    def addr_dma(V_X1=V_X1, V_X2=V_X2, V_X3=V_X3, V_X4=V_X4):
        a.e("v_lshrrev_b32 v%d, 4, v0" % V_X1)
        a.e("v_lshrrev_b32 v%d, 3, v0" % V_X2)
        a.e("s_lshl_b32 s%d, s%d, 3" % (S_T3, S_WS))
        a.e("v_add_u32 v%d, s%d, v%d" % (V_X2, S_T3, V_X2))
        a.e("v_bfe_u32 v%d, v0, 1, 2" % V_X3)
        a.e("v_and_b32 v%d, 1, v%d" % (V_X4, V_X1))
        a.e("v_xor_b32 v%d, v%d, v%d" % (V_X3, V_X3, V_X4))
        a.e("s_and_b32 s%d, s%d, 1" % (S_T3, S_WS))
        a.e("s_lshl_b32 s%d, s%d, 1" % (S_T3, S_T3))
        a.e("v_xor_b32 v%d, s%d, v%d" % (V_X3, S_T3, V_X3))
        a.e("v_and_b32 v%d, 1, v0" % V_X4)
        a.e("v_lshlrev_b32 v%d, 4, v%d" % (V_X4, V_X4))
        a.e("v_lshl_add_u32 v%d, v%d, 5, v%d" % (V_X3, V_X3, V_X4))
        a.e("v_mul_u32_u24 v%d, 0x3000, v%d" % (V_VW, V_X2))
        a.e("v_add_u32 v%d, v%d, v%d" % (V_VW, V_VW, V_X3))
        a.e("v_mul_u32_u24 v%d, 0x180, v%d" % (V_VOFFV, V_X2))
        a.e("v_add_u32 v%d, v%d, v%d" % (V_VOFFV, V_VOFFV, V_X3))
        a.e("s_mul_i32 s%d, s%d, 36" % (S_T3, S_WS))
        a.e("v_lshrrev_b32 v%d, 3, v0" % V_X2)
        a.e("v_add_u32 v%d, s%d, v%d" % (V_X2, S_T3, V_X2))
        a.e("v_bfe_u32 v%d, v%d, 1, 3" % (V_X3, V_X2))
        a.e("v_and_b32 v%d, 7, v0" % V_X4)
        a.e("v_xor_b32 v%d, v%d, v%d" % (V_X3, V_X3, V_X4))
        a.e("v_lshlrev_b32 v%d, 4, v%d" % (V_X3, V_X3))
        a.e("v_mul_u32_u24 v%d, 0x500, v%d" % (V_X2, V_X2))
        a.e("v_add_u32 v%d, v%d, v%d" % (V_VX0, V_X2, V_X3))
        a.e("v_xor_b32 v%d, 64, v%d" % (V_X3, V_X3))
        a.e("v_add_u32 v%d, v%d, v%d" % (V_VX1, V_X2, V_X3))

    def qw_addr(dst):
        a.e("v_and_b32 v%d, 15, v0" % (dst + 2))
        a.e("v_lshlrev_b32 v%d, 4, v%d" % (dst + 2, dst + 2))
        a.e("v_lshrrev_b32 v%d, 5, v0" % dst)
        a.e("v_lshl_add_u32 v%d, v%d, 8, v%d" % (dst + 2, dst, dst + 2))
        a.e("v_bfe_u32 v%d, v0, 4, 1" % dst)
        a.e("v_lshl_add_u32 v%d, v%d, 3, v%d" % (dst + 2, dst, dst + 2))
        for tau in range(3):
            a.e("v_add_u32 v%d, s%d, v%d" % (dst + tau, S_QW + tau, dst + 2))

    def addr_rest():
        a.e("v_lshrrev_b32 v%d, 4, v0" % V_X1)
        a.e("v_and_b32 v%d, 15, v0" % V_X2)
        tr_addr(V_TRA, WLOC[0], V_X3, V_X4)
        for tau in range(3):
            a.e("v_add_u32 v%d, 0x%x, v%d" % (V_TRB + tau, WLOC[2] - WLOC[0], V_TRA + tau))
        a.e("v_lshrrev_b32 v%d, 1, v%d" % (V_X3, V_X2))
        a.e("v_xor_b32 v%d, v%d, v%d" % (V_X3, V_X3, V_X1))
        a.e("v_lshlrev_b32 v%d, 4, v%d" % (V_X3, V_X3))
        a.e("v_lshl_add_u32 v%d, v%d, 7, v%d" % (x0, V_X2, V_X3))
        a.e("v_xor_b32 v%d, 64, v%d" % (x1, x0))
        for k in range(2):
            a.e("v_add_u32 v%d, 0x%x, v%d" % (V_XB + k, XLOC[1], V_XA + k))
        a.e("v_add_u32 v%d, s%d, v%d" % (V_KR0, S_M0K, x0))
        a.e("v_add_u32 v%d, s%d, v%d" % (V_KR1, S_M0K, x1))
        a.e("v_bfe_u32 v%d, v0, 5, 1" % V_X2)
        a.e("v_bfe_u32 v%d, v0, 3, 2" % V_X3)
        a.e("v_lshl_add_u32 v%d, v%d, 3, v%d" % (V_X2, V_X2, V_X3))
        a.e("v_mul_u32_u24 v%d, 0x180, v%d" % (V_X2, V_X2))
        a.e("s_mul_i32 s%d, s%d, 24576" % (S_T3, S_WAVE))
        a.e("v_add_u32 v%d, s%d, v%d" % (V_X2, S_T3, V_X2))
        a.e("v_and_b32 v%d, 7, v0" % V_X4)
        a.e("v_xor_b32 v%d, v%d, v%d" % (V_X3, V_X4, V_X1))
        a.e("v_lshlrev_b32 v%d, 4, v%d" % (V_X3, V_X3))
        a.e("v_add_u32 v%d, v%d, v%d" % (V_VK0, V_X2, V_X3))
        a.e("v_xor_b32 v%d, 64, v%d" % (V_X3, V_X3))
        a.e("v_add_u32 v%d, v%d, v%d" % (V_VK1, V_X2, V_X3))
        a.e("v_add_u32 v%d, 0x%x, v%d" % (V_VK1, 16 * 384, V_VK1))
        qw_addr(V_QW)

    a.lines.append(".globl %s\n.p2align 8\n.type %s,@function" % (kn, kn))
    a.label(kn)
    a.e("s_cmp_ge_u32 s2, 256")
    a.e("s_cbranch_scc1 LA_end")
    a.e("s_and_b32 s%d, s2, 7" % S_T0)
    a.e("s_lshr_b32 s%d, s%d, 2" % (S_P, S_T0))
    a.e("s_mul_i32 s%d, s%d, 40" % (S_T2, S_P))
    a.e("s_add_u32 s%d, s0, s%d" % (S_T0 + 1, S_T2))
    a.e("s_addc_u32 s%d, s1, 0" % (S_T0 + 2))
    a.e("s_load_dwordx8 s[%d:%d], s[%d:%d], 0" % (S_PTR, S_PTR + 7, S_T0 + 1, S_T0 + 2))
    a.e("s_load_dwordx2 s[%d:%d], s[0:1], 96" % (S_WSP, S_WSP + 1))
    a.e("s_load_dwordx2 s[%d:%d], s[%d:%d], 32" % (S_TM, S_TM + 1, S_T0 + 1, S_T0 + 2))
    if MG:
        a.e("s_load_dwordx2 s[92:93], s[0:1], 88")
        a.e("s_mov_b32 s88, s0")
        a.e("s_mov_b32 s89, s1")
        a.e("s_mov_b32 s90, s2")
    a.e("s_lshr_b32 s%d, s2, 3" % S_T3)
    a.e("s_and_b32 s%d, s%d, 3" % (S_H, S_T0))
    a.e("s_lshl_b32 s%d, s%d, 3" % (S_H, S_H))
    a.e("s_and_b32 s%d, s%d, 7" % (S_HI, S_T3))
    a.e("s_add_u32 s%d, s%d, s%d" % (S_H, S_H, S_HI))
    a.e("s_lshr_b32 s%d, s%d, 3" % (S_B, S_T3))
    a.e("s_and_b32 s%d, s%d, 1" % (S_TYPE, S_HI))
    a.e("s_cselect_b32 s%d, %d, %d" % (S_TYPE, opt.get("tb", 2), opt.get("ta", 0)))
    if "tt" in opt:
        a.e("s_lshl_b32 s%d, s%d, 2" % (S_T3, S_HI))
        a.e("s_lshr_b32 s%d, 0x%x, s%d" % (S_TYPE, int(str(opt["tt"]), 16), S_T3))
        a.e("s_and_b32 s%d, s%d, 3" % (S_TYPE, S_TYPE))
    if "type" in opt:
        a.e("s_mov_b32 s%d, %d" % (S_TYPE, opt["type"]))
    a.e("s_lshr_b32 s%d, s%d, 1" % (S_CH, S_HI))
    a.e("s_add_u32 s%d, s%d, s%d" % (S_CH, S_CH, S_B))
    a.e("s_and_b32 s%d, s%d, 3" % (S_CH, S_CH))
    a.e("s_mul_i32 s%d, s%d, 5" % (S_CH, S_CH))
    a.e("s_lshr_b32 s%d, s%d, 1" % (S_CH, S_CH))
    if opt.get("norot"):
        a.e("s_mov_b32 s%d, 0" % S_CH)
    a.e("s_mov_b32 s%d, 0" % S_TASK)
    a.e("v_lshrrev_b32 v%d, 6, v0" % V_TMP)
    a.e("v_and_b32 v0, 63, v0")
    a.e("v_readfirstlane_b32 s%d, v%d" % (S_WAVE, V_TMP))
    a.e("v_lshlrev_b32 v%d, 4, v0" % V_L16)
    a.e("s_mov_b32 s%d, 0x%08x" % (S_C, f32((192 ** -0.5) * math.log2(math.e))))
    a.e("s_and_b32 s%d, s%d, 3" % (S_WS, S_WAVE))
    a.e("s_lshr_b32 s%d, s%d, 2" % (S_GRP, S_WAVE))
    a.e("s_lshl_b32 s%d, s%d, 13" % (S_M0K, S_WAVE))
    a.e("s_add_u32 s%d, s%d, 0x%x" % (S_M0K, S_M0K, KST))
    a.e("s_lshl_b32 s%d, s%d, 10" % (S_M0W, S_WS))
    a.e("s_mul_i32 s%d, s%d, 4608" % (S_M0X, S_WS))
    for tau in range(3):
        a.e("s_mul_i32 s%d, s%d, 3" % (S_T3, S_WS))
        a.e("s_add_u32 s%d, s%d, %d" % (S_T3, S_T3, tau))
        a.e("s_and_b32 s%d, s%d, 3" % (S_DE + tau, S_T3))
        a.e("s_lshr_b32 s%d, s%d, 2" % (S_DC + tau, S_T3))
        a.e("s_lshl_b32 s%d, s%d, 12" % (S_DC + tau, S_DC + tau))
        a.e("s_lshr_b32 s%d, s%d, 1" % (S_TQ, S_T3))
        a.e("s_mul_i32 s%d, s%d, 9216" % (S_TQ, S_TQ))
        a.e("s_and_b32 s%d, s%d, 1" % (S_T3, S_T3))
        a.e("s_lshl_b32 s%d, s%d, 9" % (S_T3, S_T3))
        a.e("s_add_u32 s%d, s%d, s%d" % (S_QW + tau, S_T3, S_TQ))
    TW, TX = 16, 17
    a.e("s_mul_i32 s%d, s%d, 60" % (S_T3, S_WAVE))
    a.e("v_min_u32 v%d, 59, v0" % V_X1)
    a.e("v_add_u32 v%d, s%d, v%d" % (V_X1, S_T3, V_X1))
    a.e("v_mul_u32_u24 v%d, 0x2ab, v%d" % (V_X2, V_X1))
    a.e("v_lshrrev_b32 v%d, 11, v%d" % (V_X2, V_X2))
    a.e("v_mul_u32_u24 v%d, 3, v%d" % (V_X3, V_X2))
    a.e("v_sub_u32 v%d, v%d, v%d" % (V_X1, V_X1, V_X3))
    a.e("s_mul_i32 s%d, s%d, 160" % (S_T3, S_B))
    a.e("v_add_u32 v%d, s%d, v%d" % (V_X2, S_T3, V_X2))
    a.e("v_mul_u32_u24 v%d, 0x3000, v%d" % (TW, V_X2))
    a.e("v_lshl_add_u32 v%d, v%d, 7, v%d" % (TW, V_X1, TW))
    a.e("s_lshr_b32 s%d, s%d, 1" % (S_T3, S_HI))
    a.e("s_mul_i32 s%d, s%d, 360" % (S_T3, S_T3))
    a.e("s_mul_i32 s%d, s%d, 45" % (S_TQ, S_WAVE))
    a.e("s_add_u32 s%d, s%d, s%d" % (S_T3, S_T3, S_TQ))
    a.e("v_min_u32 v%d, 44, v0" % V_X1)
    a.e("v_add_u32 v%d, s%d, v%d" % (V_X1, S_T3, V_X1))
    a.e("v_lshlrev_b32 v%d, 7, v%d" % (TX, V_X1))
    addr_dma()
    a.e("s_waitcnt lgkmcnt(0)")
    px, pk, pv, pw = S_PTR, S_PTR + 2, S_PTR + 4, S_PTR + 6
    a.e("s_mul_i32 s%d, s%d, 184320" % (S_T3, S_B))
    a.e("s_add_u32 s%d, s%d, s%d" % (S_X, px, S_T3))
    a.e("s_addc_u32 s%d, s%d, 0" % (S_X + 1, px + 1))
    a.e("s_mov_b32 s%d, 184320" % (S_X + 2))
    a.e("s_mov_b32 s%d, 0x20000" % (S_X + 3))
    a.e("s_mul_i32 s%d, s%d, 384" % (S_T3, S_H))
    a.e("s_add_u32 s%d, s%d, s%d" % (S_W, pw, S_T3))
    a.e("s_addc_u32 s%d, s%d, 0" % (S_W + 1, pw + 1))
    a.e("s_sub_u32 s%d, 7864320, s%d" % (S_W + 2, S_T3))
    a.e("s_mov_b32 s%d, 0x20000" % (S_W + 3))
    if opt.get("touch", 1):
        sm = opt.get("smode", 0)
        lt = a.newlabel("LA_tt")
        if sm:
            a.e("s_cmp_eq_u32 s%d, 0" % S_TYPE)
            a.e("s_cbranch_scc0 %s" % lt)
        a.e("buffer_load_dword v%d, v%d, s[%d:%d], 0 offen" % (TX, TX, S_X, S_X + 3))
        a.e("buffer_load_dword v%d, v%d, s[%d:%d], 0 offen" % (18, TW, S_W, S_W + 3))
        if sm == 1:
            a.e("buffer_load_dword v%d, v%d, s[%d:%d], 0 offen offset:384" % (19, TW, S_W, S_W + 3))
        a.label(lt)
    a.e("s_lshl_b32 s%d, s%d, 5" % (S_T3, S_B))
    a.e("s_add_u32 s%d, s%d, s%d" % (S_T3, S_T3, S_H))
    a.e("s_lshl_b32 s%d, s%d, 8" % (S_TQ, S_P))
    a.e("s_add_u32 s%d, s%d, s%d" % (S_TQ, S_TQ, S_T3))
    a.e("s_mul_i32 s%d, s%d, %d" % (S_TQ, S_TQ, O_TASK))
    a.e("s_add_u32 s%d, s%d, s%d" % (S_O, S_WSP, S_TQ))
    a.e("s_addc_u32 s%d, s%d, 0" % (S_O + 1, S_WSP + 1))
    a.e("s_mov_b32 s%d, %d" % (S_O + 2, O_TASK))
    a.e("s_mov_b32 s%d, 0x20000" % (S_O + 3))
    a.e("s_mul_i32 s%d, s%d, 196608" % (S_T3, S_T3))
    for srd, p in ((S_K, pk), (S_V, pv)):
        a.e("s_add_u32 s%d, s%d, s%d" % (srd, p, S_T3))
        a.e("s_addc_u32 s%d, s%d, 0" % (srd + 1, p + 1))
        a.e("s_mov_b32 s%d, 196608" % (srd + 2))
        a.e("s_mov_b32 s%d, 0x20000" % (srd + 3))
    a.e("s_add_u32 s%d, s%d, %d" % (S_XN, S_X, 4 * 184320))
    a.e("s_addc_u32 s%d, s%d, 0" % (S_XN + 1, S_X + 1))
    a.e("s_mov_b32 s%d, 184320" % (S_XN + 2))
    a.e("s_mov_b32 s%d, 0x20000" % (S_XN + 3))
    if MG:
        a.e("s_mov_b32 s94, 256")
        a.e("s_mov_b32 s95, 0x20000")
        a.e("s_lshl_b32 s91, s%d, 3" % S_P)
        a.e("s_add_u32 s91, s91, s%d" % S_B)
        a.e("s_lshl_b32 s91, s91, 2")
        a.e("s_lshr_b32 s%d, s%d, 3" % (S_T3, S_H))
        a.e("s_add_u32 s91, s91, s%d" % S_T3)
        a.e("s_lshl_b32 s91, s91, 2")
    else:
        lz = a.newlabel("LA_z")
        a.e("s_cmp_lt_u32 s2, 64")
        a.e("s_cbranch_scc0 %s" % lz)
        a.e("s_cmp_eq_u32 s%d, 0" % S_WAVE)
        a.e("s_cbranch_scc0 %s" % lz)
        a.e("s_add_u32 s%d, s%d, 0x3f00000" % (S_WO, S_WSP))
        a.e("s_addc_u32 s%d, s%d, 0" % (S_WO + 1, S_WSP + 1))
        a.e("s_mov_b32 s%d, 8192" % (S_WO + 2))
        a.e("s_mov_b32 s%d, 0x20000" % (S_WO + 3))
        a.e("s_lshl_b32 s%d, s2, 7" % S_T3)
        a.e("v_mov_b32 v%d, 0" % V_TMP)
        a.e("buffer_store_dword v%d, off, s[%d:%d], s%d" % (V_TMP, S_WO, S_WO + 3, S_T3))
        a.label(lz)
    a.e("s_lshr_b32 s%d, s%d, 3" % (S_T3, S_H))
    a.e("s_lshl_b32 s%d, s%d, 5" % (S_T3, S_T3))
    a.e("s_lshr_b32 s%d, s2, 3" % S_TQ)
    a.e("s_add_u32 s%d, s%d, s%d" % (S_T3, S_T3, S_TQ))
    a.e("s_mul_i32 s%d, s%d, 61440" % (S_T3, S_T3))
    a.e("s_add_u32 s%d, s%d, s%d" % (S_WO, S_TM, S_T3))
    a.e("s_addc_u32 s%d, s%d, 0" % (S_WO + 1, S_TM + 1))
    a.e("s_mov_b32 s%d, 61440" % (S_WO + 2))
    if opt.get("wo2"):
        a.e("s_and_b32 s%d, s%d, 1" % (S_T3, S_HI))
        a.e("s_cselect_b32 s%d, 0, 122880" % (S_WO + 2))
    a.e("s_mov_b32 s%d, 0x20000" % (S_WO + 3))
    a.e("s_lshl_b32 s%d, s%d, 7" % (S_KX, S_CH))
    a.e("s_mul_i32 s%d, s%d, 0xc0000" % (S_KW, S_CH))
    if dbg:
        a.e("s_lshl_b32 s%d, s2, 3" % S_T3)
        a.e("s_add_u32 s%d, s%d, s%d" % (S_T3, S_T3, S_WAVE))
        a.e("s_lshl_b32 s%d, s%d, 7" % (S_T3, S_T3))
        a.e("s_add_u32 s%d, s%d, 0x4000000" % (S_T3, S_T3))
        a.e("s_add_u32 s%d, s%d, s%d" % (S_DBG, S_WSP, S_T3))
        a.e("s_addc_u32 s%d, s%d, 0" % (S_DBG + 1, S_WSP + 1))
        a.e("s_mov_b32 s%d, 128" % (S_DBG + 2))
        a.e("s_mov_b32 s%d, 0x20000" % (S_DBG + 3))
    if opt.get("tlb"):
        l = a.newlabel("LA_tlb")
        a.e("s_cmp_eq_u32 s%d, 1" % S_WAVE)
        a.e("s_cbranch_scc0 %s" % l)
        a.e("v_mov_b32 v20, 0")
        a.e("v_mov_b32 v21, 0x%x" % (128 * 196608))
        a.e("v_mov_b32 v22, 0x%x" % (128 * O_TASK))
        a.e("s_mov_b64 exec, 1")
        a.e("global_load_dword v23, v20, s[%d:%d] nt" % (S_K, S_K + 1))
        a.e("global_load_dword v24, v20, s[%d:%d] nt" % (S_V, S_V + 1))
        a.e("global_load_dword v25, v21, s[%d:%d] nt" % (S_K, S_K + 1))
        a.e("global_load_dword v26, v21, s[%d:%d] nt" % (S_V, S_V + 1))
        a.e("global_load_dword v27, v20, s[%d:%d] nt" % (S_O, S_O + 1))
        a.e("global_load_dword v28, v22, s[%d:%d] nt" % (S_O, S_O + 1))
        a.e("global_load_dword v29, v20, s[%d:%d] nt" % (S_WO, S_WO + 1))
        a.e("s_mov_b64 exec, -1")
        a.label(l)
    for k, (sp, st) in enumerate(((S_PA, S_TA), (S_PB, S_TB))):
        a.e("s_lshl_b32 s%d, s%d, 1" % (S_T3, S_WAVE))
        a.e("s_add_u32 s%d, s%d, %d" % (S_T3, S_T3, k))
        a.e("s_mul_i32 s%d, s%d, 43" % (S_TQ, S_T3))
        a.e("s_lshr_b32 s%d, s%d, 7" % (S_TQ, S_TQ))
        a.e("s_mul_i32 s%d, s%d, 3" % (S_T2, S_TQ))
        a.e("s_sub_u32 s%d, s%d, s%d" % (S_T2, S_T3, S_T2))
        a.e("s_lshl_b32 s%d, s%d, 7" % (S_T2, S_T2))
        a.e("s_add_u32 s%d, s%d, 2" % (st, S_TQ))
        a.e("s_add_u32 s%d, s%d, 6" % (S_TQ, S_TQ))
        a.e("s_and_b32 s%d, s%d, 7" % (S_TQ, S_TQ))
        a.e("s_mul_i32 s%d, s%d, 24576" % (S_TQ, S_TQ))
        a.e("s_add_u32 s%d, s%d, s%d" % (sp, S_TQ, S_T2))
        a.e("s_cmp_ge_u32 s%d, 15" % S_T3)
        a.e("s_cselect_b32 s%d, 0x100000, s%d" % (sp, sp))
    addr_rest()
    dbgv = V_TMP if dbg else None
    NT = " nt" if opt.get("nt", True) else ""

    pairs = [(2 * ub + k, cg) for ub in range(2) for cg in range(3) for k in range(2)]

    def k_issue(p):
        kt, cg = pairs[p]
        ub, half = kt >> 1, kt & 1
        a.e("s_mov_b32 s%d, 0x%x" % (S_T3, ub * 12288 + half * 1536 + cg * 128))
        for hh in range(2):
            a.e("s_add_u32 m0, s%d, 0x%x" % (S_M0K, (p % KR) * 2048 + hh * 1024))
            a.e("s_nop 0")
            if not opt.get("nok"):
                a.e("buffer_load_dwordx4 v%d, s[%d:%d], s%d offen%s lds" % (
                    (V_VK0, V_VK1)[hh], S_K, S_K + 3, S_T3, NT), ("k", p))

    def k_take(p, lim=12):
        kt, cg = pairs[p]
        if not opt.get("nok"):
            a.e("s_waitcnt vmcnt(%d)" % a.vmn(("k", p)))
        a.e("ds_read_b128 %s, v%d offset:%d" % (vr(Kf(kt, 2 * cg), 4), V_KR0, (p % KR) * 2048))
        a.e("ds_read_b128 %s, v%d offset:%d" % (vr(Kf(kt, 2 * cg + 1), 4), V_KR1, (p % KR) * 2048))
        a.e("s_waitcnt lgkmcnt(0)")
        if p + KR < lim:
            k_issue(p + KR)

    def dma_chunk(grp, slot, tag):
        L = []
        if grp == 1:
            for n in range(5):
                g = ["s_add_u32 m0, s%d, 0x%x" % (S_M0X, XLOC[slot] + 1024 * n),
                     "s_add_u32 s%d, s%d, 0x%x" % (S_T3, S_KX, n * 10240)]
                if n == 4:
                    g.append("s_mov_b32 exec_hi, 0")
                if not opt.get("nox"):
                    g.append(("buffer_load_dwordx4 v%d, s[%d:%d], s%d offen lds" % (
                        (V_VX0, V_VX1)[n & 1], S_X, S_X + 3, S_T3), tag))
                if n == 4:
                    g.append("s_mov_b32 exec_hi, -1")
                L.append(g)
            L.append(["s_add_u32 s%d, s%d, 128" % (S_KX, S_KX),
                      "s_cmp_ge_u32 s%d, 1280" % S_KX,
                      "s_cselect_b32 s%d, 0, s%d" % (S_KX, S_KX)])
        else:
            for kh in range(2):
                for cg in range(3):
                    g = ["s_add_u32 m0, s%d, 0x%x" % (S_M0W, WLOC[slot] + kh * 12288 + 4096 * cg - 128 * cg),
                         "s_nop 0"]
                    if not opt.get("now"):
                        g.append(("buffer_load_dwordx4 v%d, s[%d:%d], s%d offen offset:%d lds" % (
                            V_VW, S_W, S_W + 3, S_KW, 128 * cg), tag))
                    L.append(g)
                L.append(["s_add_u32 s%d, s%d, 0x60000" % (S_KW, S_KW)])
            L.append(["s_cmp_ge_u32 s%d, 0x780000" % S_KW,
                      "s_cselect_b32 s%d, 0, s%d" % (S_KW, S_KW)])
        return L

    border = [4, 5, 6, 7, 0, 1, 2, 3]

    def vgoff(tile):
        return border[tile & 7] * 24576 + (tile >> 3) * 12288

    def v_dma_const(tile, slot):
        goff = vgoff(tile)
        L = []
        if opt.get("nov"):
            return L
        for cg in range(3):
            L.append(["s_add_u32 m0, s%d, 0x%x" % (S_M0W, VBASE + slot * VSLOT + 4096 * cg - 128 * cg),
                      "s_mov_b32 s%d, 0x%x" % (S_T3, goff),
                      ("buffer_load_dwordx4 v%d, s[%d:%d], s%d offen offset:%d%s lds" % (
                          V_VOFFV, S_V, S_V + 3, S_T3, 128 * cg, NT), ("v", tile))])
        return L

    def p1_reads(tiles, step):
        c, kh = step >> 1, step & 1
        fset = step & 1
        sl = c % NCH
        tb, to = (V_TRA, WLOC[sl] - WLOC[0]) if sl < 2 else (V_TRB, 0)
        xb, xo = (V_XA, 0) if sl == 0 else (V_XB, XLOC[sl] - XLOC[1])
        L = []
        for tau in range(3):
            d = V_A1 + fset * 12 + tau * 4
            L.append(["ds_read_b64_tr_b16 %s, v%d offset:%d" % (vr(d, 2), tb + tau, to + kh * 12288)])
            L.append(["ds_read_b64_tr_b16 %s, v%d offset:%d" % (vr(d + 2, 2), tb + tau, to + kh * 12288 + 512)])
        for j, t in enumerate(tiles):
            d = V_B1 + fset * 20 + j * 4
            L.append(["ds_read_b128 %s, v%d offset:%d" % (vr(d, 4), xb + kh, xo + t * 2048)])
        return L

    def p1_mfmas(tiles, fset, first=False):
        M = []
        for j, t in enumerate(tiles):
            for tau in range(3):
                acc = V_ACC1 + (j * 3 + tau) * 4
                M.append("v_mfma_f32_16x16x32_bf16 %s, %s, %s, %s" % (
                    vr(acc, 4), vr(V_A1 + fset * 12 + tau * 4, 4), vr(V_B1 + fset * 20 + j * 4, 4),
                    "0" if first else vr(acc, 4)))
        return M

    def vmwait(tag, extra=""):
        if tag in a.vm:
            a.e("s_waitcnt vmcnt(%d)%s" % (a.vmn(tag), extra))
        elif extra:
            a.e("s_waitcnt" + extra)

    stamp(a, 0, dbgv)
    if dbg:
        a.e("s_getreg_b32 s%d, hwreg(HW_REG_XCC_ID)" % S_T3)
        a.e("v_mov_b32 v%d, s%d" % (V_TMP, S_T3))
        a.lines.append("    buffer_store_dword v%d, off, s[%d:%d], 0 offset:60" % (V_TMP, S_DBG, S_DBG + 3))
        a.e("s_getreg_b32 s%d, hwreg(HW_REG_HW_ID)" % S_T3)
        a.e("s_nop 1")
        a.e("v_mov_b32 v%d, s%d" % (V_TMP, S_T3))
        a.lines.append("    buffer_store_dword v%d, off, s[%d:%d], 0 offset:56" % (V_TMP, S_DBG, S_DBG + 3))
        a.e("s_memrealtime s[%d:%d]" % (S_TM, S_TM + 1))
        a.e("s_waitcnt lgkmcnt(0)")
        a.e("v_mov_b32 v%d, s%d" % (V_TMP, S_TM))
        a.lines.append("    buffer_store_dword v%d, off, s[%d:%d], 0 offset:52" % (V_TMP, S_DBG, S_DBG + 3))
    S_VEM, S_VEO = S_VR, S_PR
    a.e("s_mul_i32 s%d, s%d, %d" % (S_VEM, S_GRP, VSLOT))
    a.e("s_add_u32 s%d, s%d, s%d" % (S_VEM, S_VEM, S_M0W))
    a.e("s_mul_i32 s%d, s%d, %d" % (S_VEO, S_GRP, vgoff(1) - vgoff(0)))
    a.e("s_add_u32 s%d, s%d, 0x%x" % (S_VEO, S_VEO, vgoff(0)))

    def v_early():
        for cg in range(3):
            a.e("s_add_u32 m0, s%d, 0x%x" % (S_VEM, VBASE + 4096 * cg - 128 * cg))
            a.e("s_nop 0")
            if not opt.get("nov"):
                a.e("buffer_load_dwordx4 v%d, s[%d:%d], s%d offen offset:%d%s lds" % (
                    V_VOFFV, S_V, S_V + 3, S_VEO, 128 * cg, NT), "ve")

    def o_stores(wait, pol=None):
        ONT = ("", " nt", " sc1", " sc0 sc1")[opt.get("ont", 3) if pol is None else pol]
        for k in range(7):
            if wait:
                a.e("s_waitcnt lgkmcnt(%d)" % (6 - k))
            a.e("s_mov_b32 s%d, %d" % (S_T3, k * 1024))
            a.e("buffer_store_dwordx4 %s, v%d, s[%d:%d], s%d offen%s" % (vr(160 + 4 * k, 4), V_YW, S_O, S_O + 3, S_T3, ONT))

    VP = opt.get("vp", 1)
    KE = opt.get("ke", 0)

    def k_pair(p0):
        l = a.newlabel("LA_kt")
        a.e("s_cmp_le_u32 s%d, %d" % (S_TYPE, p0 // 6))
        a.e("s_cbranch_scc0 %s" % l)
        k_take(p0)
        k_take(p0 + 1)
        if p0 == 6:
            v_early()
        if p0 == (8 if VP else 10):
            v_panel(0)
        a.label(l)
        if p0 == 10 and VP == 2:
            v_panel(1)

    def v_panel(k):
        if k == 0:
            a.e("s_mul_i32 s%d, s%d, 3072" % (S_T3, S_WS))
            a.e("v_subrev_u32 v%d, s%d, v%d" % (V_VK0, S_T3, V_VOFFV))
            a.e("s_and_b32 s%d, s%d, 1" % (S_T3, S_WS))
            a.e("s_lshl_b32 s%d, s%d, 6" % (S_T3, S_T3))
            a.e("v_xor_b32 v%d, s%d, v%d" % (V_VK0, S_T3, V_VK0))
            a.e("v_xor_b32 v%d, 64, v%d" % (V_VK1, V_VK0))
        for i in range(4):
            a.e("s_add_u32 m0, s%d, 0x%x" % (S_M0K, k * 4096 + i * 1024))
            a.e("s_add_u32 s%d, s%d, %d" % (S_T3, (S_PA, S_PB)[k], i * 3072))
            if not opt.get("nov"):
                a.e("buffer_load_dwordx4 v%d, s[%d:%d], s%d offen%s lds" % (
                    (V_VK0, V_VK1)[i & 1], S_V, S_V + 3, S_T3, NT), "p%d" % k)

    a.e("s_cmp_eq_u32 s%d, 0" % S_TYPE)
    a.e("s_cbranch_scc1 LA_p1")
    a.e("s_cmp_eq_u32 s%d, 1" % S_TYPE)
    a.e("s_cbranch_scc1 LA_kh")
    a.vm = []
    for p in range(KR):
        k_issue(p)
    for p in range(12):
        k_take(p)
    a.e("s_branch LA_kd")
    a.label("LA_kh")
    a.vm = []
    for p in range(KR):
        k_issue(p)
    for p in range(6):
        k_take(p, 6)
    a.label("LA_kd")
    a.e("s_barrier")
    stamp(a, 1, dbgv)
    a.label("LA_p1")
    a.e("s_cmp_eq_u32 s%d, 0" % S_GRP)
    a.e("s_cbranch_scc0 LA_p1_g1")
    for grp in (0, 1):
        a.vm = []
        tiles = [5, 6, 7, 8] if grp == 0 else [0, 1, 2, 3, 4]
        if grp == 1:
            a.label("LA_p1_g1")
        for c in range(2):
            a.grp(dma_chunk(grp, c, c))
        vmwait(0)
        a.label("LA_p1_re%d" % grp)
        a.e("s_barrier")
        a.grp(p1_reads(tiles, 0))
        pend = []
        kstep = opt.get("ks1", 15) if grp == 1 else opt.get("ks0", 17)

        def k_start():
            sv = list(a.vm)
            l, l1 = a.newlabel("LA_ks"), a.newlabel("LA_ks")
            a.e("s_cmp_eq_u32 s%d, 1" % S_TYPE)
            a.e("s_cbranch_scc0 %s" % l1)
            for p in range(6, 6 + KR):
                k_issue(p)
            a.label(l1)
            a.e("s_cmp_eq_u32 s%d, 0" % S_TYPE)
            a.e("s_cbranch_scc0 %s" % l)
            for p in range(KR):
                k_issue(p)
            a.label(l)
            a.vm = sv
        for step in range(20):
            c = step >> 1
            oth = []
            if step & 1:
                if c + 1 < 10 and step > kstep and not opt.get("nok"):
                    assert a.vmn(c + 1) == 0
                    l, l1 = a.newlabel("LA_kw"), a.newlabel("LA_kw")
                    a.e("s_cmp_eq_u32 s%d, 2" % S_TYPE)
                    a.e("s_cbranch_scc0 %s" % l)
                    a.e("s_waitcnt vmcnt(0)")
                    a.label(l)
                    a.e("s_waitcnt vmcnt(%d) lgkmcnt(0)" % (2 * KR))
                elif c + 1 < 10:
                    vmwait(c + 1, " lgkmcnt(0)")
                else:
                    a.e("s_waitcnt lgkmcnt(0)")
                a.e("s_barrier")
                if opt.get("dbg2"):
                    a.e("s_memtime s[%d:%d]" % (66 + 2 * c, 67 + 2 * c))
            else:
                a.e("s_waitcnt lgkmcnt(0)")
            if step + 1 < 20:
                oth = p1_reads(tiles, step + 1)
            dm = []
            if step == 0:
                dm = dma_chunk(grp, 2, 2)
            if (step & 1) and c + 3 < 10:
                full = dma_chunk(grp, c % NCH, c + 3)
                hsplit = 4 if grp == 0 else 3
                dm, pend = full[:hsplit], full[hsplit:]
            elif pend:
                dm, pend = pend, []
            mf = p1_mfmas(tiles, step & 1, step == 0)
            if opt.get("nomf"):
                mf = ["s_nop 0"] * len(mf)
            if opt.get("nord"):
                oth = []
            nm = len(mf)
            ri = di = 0
            for i, m in enumerate(mf):
                a.e(m)
                k = -(-(len(oth) - ri) // (nm - i))
                for _ in range(k):
                    a.g1(oth[ri])
                    ri += 1
                if di < len(dm) and (i + 1) * len(dm) >= (di + 1) * nm - nm // 2:
                    a.g1(dm[di])
                    di += 1
            while di < len(dm):
                a.g1(dm[di])
                di += 1
            if step == kstep:
                k_start()
        if opt.get("touch", 2) == 1:
            l = a.newlabel("LA_tx")
            a.e("s_cmp_eq_u32 s%d, 0" % S_TASK)
            a.e("s_cbranch_scc0 %s" % l)
            a.e("s_lshr_b32 s%d, s%d, 1" % (S_T3, S_HI))
            a.e("s_mul_i32 s%d, s%d, 360" % (S_T3, S_T3))
            a.e("s_mul_i32 s%d, s%d, 45" % (S_TQ, S_WAVE))
            a.e("s_add_u32 s%d, s%d, s%d" % (S_T3, S_T3, S_TQ))
            a.e("v_min_u32 v%d, 44, v0" % V_X1)
            a.e("v_add_u32 v%d, s%d, v%d" % (V_X1, S_T3, V_X1))
            a.e("v_lshlrev_b32 v%d, 7, v%d" % (V_X1, V_X1))
            a.e("buffer_load_dword v%d, v%d, s[%d:%d], 0 offen" % (V_TMP, V_X1, S_XN, S_XN + 3))
            a.label(l)
        if opt.get("late", 0):
            l = a.newlabel("LA_lo")
            a.e("s_cmp_eq_u32 s%d, 0" % S_TASK)
            a.e("s_cbranch_scc1 %s" % l)
            o_stores(False)
            a.e("s_add_u32 s%d, s%d, %d" % (S_O, S_O, 128 * O_TASK))
            a.e("s_addc_u32 s%d, s%d, 0" % (S_O + 1, S_O + 1))
            a.label(l)
        if kstep >= 20:
            k_start()
        a.vm = [("k", p) for p in range(KR) for _ in range(2)]
        if opt.get("nok"):
            a.vm = []
        if KE:
            k_pair(0)
        a.e("s_nop 7")
        for j, t in enumerate(tiles):
            for tau in range(3):
                acc = V_ACC1 + (j * 3 + tau) * 4
                a.e("v_cvt_pk_bf16_f32 v%d, v%d, v%d" % (acc, acc, acc + 1))
                a.e("v_cvt_pk_bf16_f32 v%d, v%d, v%d" % (acc + 1, acc + 2, acc + 3))
                a.e("ds_write_b64 v%d, %s offset:%d" % (V_QW + tau, vr(acc, 2), t * 1024))
        a.e("s_waitcnt lgkmcnt(0)")
        if grp == 0:
            a.e("s_branch LA_p1_done")
    a.label("LA_p1_done")
    stamp(a, 2, dbgv)
    if opt.get("dbg2"):
        for c in range(10):
            a.e("v_mov_b32 v%d, s%d" % (V_TMP, 66 + 2 * c))
            a.lines.append("    buffer_store_dword v%d, off, s[%d:%d], 0 offset:%d" % (V_TMP, S_DBG, S_DBG + 3, 64 + 4 * c))
    a.label("LA_p2_re")
    a.e("s_barrier")
    if MG:
        l = a.newlabel("LA_sg")
        a.e("s_sub_u32 s%d, s%d, 1" % (S_T3, S_TASK))
        a.e("s_or_b32 s%d, s%d, s%d" % (S_T3, S_T3, S_WAVE))
        a.e("s_cbranch_scc1 %s" % l)
        a.e("v_mov_b32 v%d, 1" % V_TMP)
        a.e("s_mov_b64 exec, 1")
        a.lines.append("    buffer_atomic_add v%d, off, s[92:95], s91 sc1" % V_TMP)
        a.e("s_mov_b64 exec, -1")
        a.label(l)
    stamp(a, 3, dbgv)
    vm_save = list(a.vm)
    a.e("s_cmp_eq_u32 s%d, 2" % S_TYPE)
    a.e("s_cbranch_scc0 LA_p2_go")
    v_early()
    v_panel(0)
    a.label("LA_p2_go")
    a.vm = vm_save
    seq = [(ub, s, t) for ub in range(2) for s in range(6) for t in range(9)]
    QB = ([88, 92, 96, 100, 104, 108], [188, 192, 196, 200, 4, 8])
    PD = 4

    def qbuf(i):
        return QB[seq[i][0]][i % 6]

    def qread(i):
        ub, s, t = seq[i]
        return "ds_read_b128 %s, v%d offset:%d" % (vr(qbuf(i), 4), V_L16, (s * 9 + t) * 1024)

    def blk(ub, t):
        return [S(kt, t) + r for kt in (2 * ub, 2 * ub + 1) for r in range(4)]

    def exp_stream(ub, t, tmp, first):
        v = blk(ub, t)
        L = []
        for x in v:
            L.append("v_fma_f32 v%d, v%d, s%d, -v%d" % (x, x, S_C, V_MC + t))
        for x in v:
            L.append("v_exp_f32 v%d, v%d" % (x, x))
        return L

    va = []
    for t in range(9):
        v = blk(0, t)
        m = V_MC + t
        va.append("v_max3_f32 v%d, v%d, v%d, v%d" % (m, v[0], v[1], v[2]))
        va.append("v_max3_f32 v%d, v%d, v%d, v%d" % (V_RT, v[3], v[4], v[5]))
        va.append("v_max3_f32 v%d, v%d, v%d, v%d" % (m, m, v[6], v[7]))
        va.append("v_max_f32 v%d, v%d, v%d" % (m, m, V_RT))
        va.append("v_mul_f32 v%d, s%d, v%d" % (m, S_C, m))
        va += exp_stream(0, t, V_RT, True)
    vai = 0
    for i in range(PD):
        a.e(qread(i))
    n = len(seq)
    PP = opt.get("pp", 1)
    nva1 = opt.get("nva1", 8)
    per_tile = len(va) // 9
    if PP:
        a.e("s_setprio 2")
    for i, (ub, s, t) in enumerate(seq):
        if PP and i == 54:
            a.e("s_setprio 0")
            a.e("s_nop 4")
            for ins in va[:nva1 * per_tile]:
                a.e(ins)
            vai = nva1 * per_tile
            a.e("s_setprio 2")
        if t == 0 and s % 2 == 0 and opt.get("dbg4"):
            a.e("s_memtime s[%d:%d]" % (66 + 4 * (ub * 3 + s // 2), 67 + 4 * (ub * 3 + s // 2)))
        p0 = ub * 6 + s + 2 * KE
        if t == 0 and s % 2 == 0 and p0 < 12:
            k_pair(p0)
            if opt.get("dbg4"):
                a.e("s_memtime s[%d:%d]" % (68 + 4 * (ub * 3 + s // 2), 69 + 4 * (ub * 3 + s // 2)))
                a.e("s_waitcnt lgkmcnt(0)")
        if i + PD < n:
            a.e(qread(i + PD))
            a.e("s_waitcnt lgkmcnt(%d)" % PD)
        else:
            a.e("s_waitcnt lgkmcnt(%d)" % (n - 1 - i))
        for k in range(2):
            kt = 2 * ub + k
            cc = "0" if s == 0 else vr(S(kt, t), 4)
            a.e("v_mfma_f32_16x16x32_bf16 %s, %s, %s, %s" % (
                vr(S(kt, t), 4), vr(Kf(kt, s), 4), vr(qbuf(i), 4), cc))
            if not PP and ub == 1 and i >= 54 + 3:
                rem = 2 * (n - i) - k
                cnt = -(-(len(va) - vai) // rem)
                for _ in range(cnt):
                    a.e(va[vai])
                    vai += 1
    if VP == 3:
        v_panel(1)
    if PP:
        a.e("s_setprio 0")
        for ins in va[vai:]:
            a.e(ins)
        vai = len(va)
    assert vai == len(va)
    if VP < 2:
        v_panel(1)
    stamp(a, 4, dbgv)
    if opt.get("dbg4"):
        for c in range(12):
            a.e("v_mov_b32 v%d, s%d" % (V_TMP, 66 + 2 * c))
            a.lines.append("    buffer_store_dword v%d, off, s[%d:%d], 0 offset:%d" % (V_TMP, S_DBG, S_DBG + 3, 64 + 4 * c))
    MB = V_RT + 60
    a.e("v_and_b32 v%d, 15, v0" % V_Y)
    a.e("v_mul_u32_u24 v%d, 48, v%d" % (V_Y, V_Y))
    a.e("s_lshl_b32 s%d, s%d, 2" % (S_T3, S_WAVE))
    a.e("v_add_u32 v%d, s%d, v%d" % (V_YW, S_T3, V_Y))
    a.e("s_nop 4")
    for stp in range(5):
        for t in range(9):
            v = blk(1, t)
            m = MB + t
            if stp == 0:
                a.e("v_max3_f32 v%d, v%d, v%d, v%d" % (m, v[0], v[1], v[2]))
            elif stp < 3:
                a.e("v_max3_f32 v%d, v%d, v%d, v%d" % (m, m, v[1 + 2 * stp], v[2 + 2 * stp]))
            elif stp == 3:
                a.e("v_max_f32 v%d, v%d, v%d" % (m, m, v[7]))
            else:
                a.e("v_mul_f32 v%d, s%d, v%d" % (m, S_C, m))
    for t in range(9):
        a.e("v_max_f32 v%d, v%d, v%d" % (MB + t, MB + t, V_MC + t))
    xlane_reduce(a, [MB + t for t in range(9)], [V_RT + t for t in range(9)], "v_max_f32")
    a.e("s_mov_b64 exec, 0xffff")
    for t in range(9):
        a.e("ds_write_b32 v%d, v%d offset:%d" % (V_YW, MB + t, MAXB + t * 768))
    a.e("s_mov_b64 exec, -1")
    a.e("s_waitcnt lgkmcnt(0)")
    a.e("s_barrier")
    RT = V_RT
    for t in range(9):
        a.e("ds_read_b128 %s, v%d offset:%d" % (vr(RT + t * 8, 4), V_Y, MAXB + t * 768))
        a.e("ds_read_b128 %s, v%d offset:%d" % (vr(RT + t * 8 + 4, 4), V_Y, MAXB + t * 768 + 16))
    tr_addr(V_TVL, VBASE, V_PB1, V_PW)
    a.e("v_add_u32 v%d, 0x%x, v%d" % (V_PB1, 4 * PSLOT, V_L16))
    a.e("s_mul_i32 s%d, s%d, %d" % (S_T3, S_WAVE, PSLOT))
    a.e("v_add_u32 v%d, s%d, v%d" % (V_PW, S_T3, V_L16))
    a.e("s_waitcnt lgkmcnt(0)")
    a.e("s_barrier")
    for t in range(9):
        b = RT + t * 8
        a.e("v_max3_f32 v%d, v%d, v%d, v%d" % (b, b, b + 1, b + 2))
        a.e("v_max3_f32 v%d, v%d, v%d, v%d" % (b + 3, b + 3, b + 4, b + 5))
        a.e("v_max3_f32 v%d, v%d, v%d, v%d" % (b, b, b + 6, b + 7))
    for t in range(9):
        b = RT + t * 8
        a.e("v_max_f32 v%d, v%d, v%d" % (b, b, b + 3))
    for t in range(9):
        b = RT + t * 8
        a.e("v_sub_f32 v%d, v%d, v%d" % (b + 2, V_MC + t, b))
    for t in range(9):
        b = RT + t * 8
        a.e("v_exp_f32 v%d, v%d" % (b + 2, b + 2))
        a.e("v_mov_b32 v%d, v%d" % (V_MC + t, b))
    for k in range(4):
        a.e("v_mov_b32 v%d, 0x3f803f80" % (V_ONE + k))
    for t in range(9):
        b = RT + t * 8
        v = blk(0, t)
        for k in range(4):
            a.e("v_pk_mul_f32 %s, %s, %s op_sel_hi:[1,0]" % (vr(v[2 * k], 2), vr(v[2 * k], 2), vr(b + 2, 2)))
        d = S(0, t)
        for k in range(4):
            a.e("v_cvt_pk_bf16_f32 v%d, v%d, v%d" % (d + k, v[2 * k], v[2 * k + 1]))
        a.e("ds_write_b128 v%d, %s offset:%d" % (V_PW, vr(d, 4), t * 1024))
        if t >= 1:
            a.e("v_mfma_f32_16x16x32_bf16 %s, %s, %s, 0" % (vr(S(1, t - 1), 4), vr(V_ONE, 4), vr(S(0, t - 1), 4)))
        if t >= 2:
            a.e("v_mov_b32 v%d, v%d" % (V_SUM + t - 2, S(1, t - 2)))
    a.e("s_nop 0")
    a.e("v_mfma_f32_16x16x32_bf16 %s, %s, %s, 0" % (vr(S(1, 8), 4), vr(V_ONE, 4), vr(S(0, 8), 4)))
    a.e("s_nop 7")
    a.e("v_mov_b32 v%d, v%d" % (V_SUM + 7, S(1, 7)))
    a.e("v_mov_b32 v%d, v%d" % (V_SUM + 8, S(1, 8)))
    for tau in range(3):
        a.e("v_add_u32 v%d, 0x%x, v%d" % (V_TVH + tau, 4 * VSLOT, V_TVL + tau))
    stamp(a, 5, dbgv)
    a.e("s_cmp_eq_u32 s%d, 0" % S_GRP)
    a.e("s_cbranch_scc0 LA_p3_g1")

    def p3_reads(tiles, step):
        fset = step & 1
        vs = step % NV
        tb, vo = (V_TVL, vs * VSLOT) if vs < 4 else (V_TVH, (vs - 4) * VSLOT)
        ps = border[step & 7]
        pb, po = (V_PB0, ps * PSLOT) if ps < 4 else (V_PB1, (ps - 4) * PSLOT)
        L = []
        for tau in range(3):
            d = V_A3[fset] + tau * 4
            L.append(["ds_read_b64_tr_b16 %s, v%d offset:%d" % (vr(d, 2), tb + tau, vo)])
            L.append(["ds_read_b64_tr_b16 %s, v%d offset:%d" % (vr(d + 2, 2), tb + tau, vo + 512)])
        for j, t in enumerate(tiles):
            d = V_B3[fset] + j * 4
            L.append(["ds_read_b128 %s, v%d offset:%d" % (vr(d, 4), pb, po + t * 1024)])
        return L

    def p3_mfmas(tiles, step):
        fset = step & 1
        M = []
        for j, t in enumerate(tiles):
            for tau in range(3):
                acc = V_ACC3 + (j * 3 + tau) * 4
                M.append("v_mfma_f32_16x16x32_bf16 %s, %s, %s, %s" % (
                    vr(acc, 4), vr(V_A3[fset] + tau * 4, 4), vr(V_B3[fset] + j * 4, 4),
                    "0" if step == 0 else vr(acc, 4)))
        return M

    SUMB = 0
    SUMLOC = 147456
    OST = 2 * CH
    for grp in (0, 1):
        tiles = [0, 1, 2, 3, 4] if grp == 0 else [5, 6, 7, 8]
        vb = []
        for t in range(9):
            st = exp_stream(1, t, V_ET, False)
            v = blk(1, t)
            d = S(2, t)
            if t >= 1:
                st.insert(4, "v_mfma_f32_16x16x32_bf16 %s, %s, %s, 0" % (vr(S(3, t - 1), 4), vr(V_ONE, 4), vr(S(2, t - 1), 4)))
            if t >= 2:
                st.insert(2, "v_add_f32 v%d, v%d, v%d" % (V_SUM + t - 2, V_SUM + t - 2, S(3, t - 2)))
            vb += st
            for k in range(4):
                vb.append("v_cvt_pk_bf16_f32 v%d, v%d, v%d" % (d + k, v[2 * k], v[2 * k + 1]))
        c0b, c0e = opt.get("c0b", 0), opt.get("c0e", 9)
        cbeg, cend = (c0b, c0e) if grp == 0 else (0, 6)
        if grp == 0:
            wsteps = {7: [0, 1], 8: [2, 3, 4], 9: [5, 6], 10: [7, 8]}
        else:
            wsteps = {3: [0, 1], 4: [2, 3, 4], 5: [5, 6], 6: [7, 8]}
        xl = ["v_mfma_f32_16x16x32_bf16 %s, %s, %s, 0" % (vr(S(3, 8), 4), vr(V_ONE, 4), vr(S(2, 8), 4)),
              "v_add_f32 v%d, v%d, v%d" % (V_SUM + 7, V_SUM + 7, S(3, 7))]
        xl2 = ["v_add_f32 v%d, v%d, v%d" % (V_SUM + 8, V_SUM + 8, S(3, 8))]
        xstep = cend
        pubstep = 13
        if grp == 1:
            a.label("LA_p3_g1")
        a.vm = ["ve"] * 3 + ["p0"] * 4 + ["p1"] * 4
        if opt.get("nov"):
            a.vm = []
        vmwait("ve", " lgkmcnt(0)")
        a.e("s_barrier")
        a.grp(p3_reads(tiles, 0))
        vbi = 0
        for step in range(16):
            if 1 <= step <= 5 and not opt.get("nov"):
                la, lb = a.newlabel("LA_wa"), a.newlabel("LA_wb")
                a.e("s_cmp_le_u32 s%d, %d" % (S_TA, step + 1))
                a.e("s_cbranch_scc0 %s" % lb)
                a.e("s_waitcnt vmcnt(%d)" % a.vmn("p0"))
                a.e("s_cmp_le_u32 s%d, %d" % (S_TB, step + 1))
                a.e("s_cbranch_scc0 %s" % lb)
                a.e("s_waitcnt vmcnt(%d)" % a.vmn("p1"))
                a.label(lb)
                a.e("s_waitcnt lgkmcnt(0)")
            elif grp == 1 and 6 <= step < 15:
                vmwait(("v", step + 1), " lgkmcnt(0)")
            else:
                a.e("s_waitcnt lgkmcnt(0)")
            a.e("s_barrier")
            if opt.get("dbg3") and step < 15:
                a.e("s_memtime s[%d:%d]" % (66 + 2 * step, 67 + 2 * step))
            oth = p3_reads(tiles, step + 1) if step < 15 else []
            if grp == 1 and step + NV < 16:
                oth = oth + v_dma_const(step + NV, step % NV)
            valu = []
            if cbeg <= step < cend:
                k = -(-(len(vb) - vbi) // (cend - step))
                valu = vb[vbi:vbi + k]
                vbi += k
            if step == xstep:
                valu = xl
            if step == xstep + 1:
                valu = xl2
            if step == 12:
                valu = valu + ["v_add_u32 v%d, 0x%x, v%d" % (V_Y, SUMLOC, V_Y), "v_add_u32 v%d, 0x%x, v%d" % (V_YW, SUMLOC, V_YW)]
            if step == 14:
                tmpa = Asm()
                sa = a
                globals()["_a"] = None
                lines0 = len(a.lines)
                addr_dma(128, 129, 130, 131)
                valu = valu + [l.strip() for l in a.lines[lines0:]]
                del a.lines[lines0:]
            if step == 15:
                lnx = a.newlabel("LA_nx")
                a.e("s_cmp_eq_u32 s%d, 0" % S_TASK)
                a.e("s_cbranch_scc0 %s" % lnx)
                a.e("s_mov_b32 s%d, s%d" % (S_X, S_XN))
                a.e("s_mov_b32 s%d, s%d" % (S_X + 1, S_XN + 1))
                a.vm = []
                a.grp(dma_chunk(grp, 0, 0))
                a.label(lnx)
            ST = 88
            if step == 13:
                lines0 = len(a.lines)
                qw_addr(V_QW3)
                for tau in range(3):
                    a.e("v_add_u32 v%d, 0x%x, v%d" % (V_QW3 + tau, OST, V_QW3 + tau))
                valu = valu + [l.strip() for l in a.lines[lines0:]]
                del a.lines[lines0:]
            if step == 15:
                for j, t in enumerate(tiles):
                    for k in range(4):
                        valu.append("v_add_f32 v%d, v%d, v%d" % (ST + j * 8 + k, ST + j * 8 + k, ST + j * 8 + k + 4))
                for j, t in enumerate(tiles):
                    valu.append("v_add_f32 v%d, v%d, v%d" % (ST + j * 8, ST + j * 8, ST + j * 8 + 1))
                    valu.append("v_add_f32 v%d, v%d, v%d" % (ST + j * 8 + 2, ST + j * 8 + 2, ST + j * 8 + 3))
                for j, t in enumerate(tiles):
                    valu.append("v_add_f32 v%d, v%d, v%d" % (ST + j * 8, ST + j * 8, ST + j * 8 + 2))
                for j, t in enumerate(tiles):
                    valu.append("v_rcp_f32 v%d, v%d" % (ST + j * 8, ST + j * 8))
            tail = []
            if step == 14:
                for j, t in enumerate(tiles):
                    tail.append(["ds_read_b128 %s, v%d offset:%d" % (vr(ST + j * 8, 4), V_Y, SUMB + t * 768)])
                    tail.append(["ds_read_b128 %s, v%d offset:%d" % (vr(ST + j * 8 + 4, 4), V_Y, SUMB + t * 768 + 16)])
            if step in wsteps:
                for t in wsteps[step]:
                    tail.append(["ds_write_b128 v%d, %s offset:%d" % (V_PW, vr(S(2, t), 4), t * 1024)])
            if step == pubstep:
                tail.append(["s_mov_b64 exec, 0xffff"] +
                            ["ds_write_b32 v%d, v%d offset:%d" % (V_YW, V_SUM + t, SUMB + t * 768) for t in range(9)] +
                            ["s_mov_b64 exec, -1"])
            mf = p3_mfmas(tiles, step)
            if step == opt.get("tstep", 9) and opt.get("touch", 2) == 2:
                T1, TD = 46, (159 if MG else 47)
                l2, l3 = a.newlabel("LA_t2"), a.newlabel("LA_t3")
                a.e("s_cmp_eq_u32 s%d, 0" % S_TASK)
                a.e("s_cbranch_scc0 %s" % l2)
                a.e("s_lshr_b32 s%d, s%d, 1" % (S_T3, S_HI))
                a.e("s_mul_i32 s%d, s%d, 360" % (S_T3, S_T3))
                a.e("s_mul_i32 s%d, s%d, 45" % (S_TQ, S_WAVE))
                a.e("s_add_u32 s%d, s%d, s%d" % (S_T3, S_T3, S_TQ))
                a.e("v_min_u32 v%d, 44, v0" % T1)
                a.e("v_add_u32 v%d, s%d, v%d" % (T1, S_T3, T1))
                a.e("v_lshlrev_b32 v%d, 7, v%d" % (T1, T1))
                a.e("buffer_load_dword v%d, v%d, s[%d:%d], 0 offen" % (TD, T1, S_XN, S_XN + 3), "t")
                if not opt.get("woe"):
                    a.e("s_branch %s" % l3)
                    a.label(l2)
                a.e("s_mul_i32 s%d, s%d, 7680" % (S_T3, S_WAVE))
                a.e("v_min_u32 v%d, 59, v0" % T1)
                a.e("v_lshlrev_b32 v%d, 7, v%d" % (T1, T1))
                a.lines.append("    buffer_load_dword v%d, v%d, s[%d:%d], s%d offen" % (TD, T1, S_WO, S_WO + 3, S_T3))
                if opt.get("wo2"):
                    a.e("s_add_u32 s%d, s%d, 61440" % (S_T3, S_T3))
                    a.lines.append("    buffer_load_dword v%d, v%d, s[%d:%d], s%d offen" % (TD, T1, S_WO, S_WO + 3, S_T3))
                if opt.get("woe"):
                    a.e("s_branch %s" % l3)
                    a.label(l2)
                    a.lines.append("    buffer_load_dword v%d, off, s[%d:%d], 0" % (TD, S_WO, S_WO + 3))
                a.label(l3)

            def cost(ins):
                return 2 if ins.startswith("v_exp") else 1

            def take(lst, slots):
                k = c = 0
                while k < len(lst) and c + cost(lst[k]) <= slots:
                    c += cost(lst[k])
                    k += 1
                return lst[:k], lst[k:]

            def mixed(mf, mem, valu):
                nm = len(mf)
                mi = 0
                for i, m in enumerate(mf):
                    a.e(m)
                    k = -(-(len(mem) - mi) // (nm - i))
                    for _ in range(k):
                        a.g1(mem[mi])
                        mi += 1
                    now, valu = take(valu, 2)
                    for ins in now:
                        a.e(ins)
                return valu
            rd = [g for g in oth if g[0].startswith("ds_read")]
            dm = [g for g in oth if not g[0].startswith("ds_read")]
            mem = rd + tail + dm
            nm = len(mf)
            span = max(1, int(nm * opt.get("span", 70) / 100))
            mi = vi = 0
            for i, m in enumerate(mf):
                a.e(m)
                k = -(-(len(mem) - mi) // max(span - i, 1))
                for _ in range(k):
                    a.g1(mem[mi])
                    mi += 1
                k = -(-(len(valu) - vi) // (nm - i))
                for _ in range(k):
                    a.e(valu[vi])
                    vi += 1
        assert vbi == len(vb)
        stamp(a, 6, dbgv)
        if opt.get("dbg3"):
            for c in range(15):
                a.e("v_mov_b32 v%d, s%d" % (V_TMP, 66 + 2 * c))
                a.lines.append("    buffer_store_dword v%d, off, s[%d:%d], 0 offset:%d" % (V_TMP, S_DBG, S_DBG + 3, 64 + 4 * c))
        lnx = a.newlabel("LA_nx")
        a.e("s_cmp_eq_u32 s%d, 0" % S_TASK)
        a.e("s_cbranch_scc0 %s" % lnx)
        a.grp(dma_chunk(grp, 1, 1))
        a.label(lnx)
        a.e("s_nop 7")
        for j, t in enumerate(tiles):
            for tau in range(3):
                acc = V_ACC3 + (j * 3 + tau) * 4
                for r in range(2):
                    a.e("v_pk_mul_f32 %s, %s, %s op_sel_hi:[1,0]" % (
                        vr(acc + 2 * r, 2), vr(acc + 2 * r, 2), vr(ST + j * 8, 2)))
                a.e("v_cvt_pk_bf16_f32 v%d, v%d, v%d" % (acc, acc, acc + 1))
                a.e("v_cvt_pk_bf16_f32 v%d, v%d, v%d" % (acc + 1, acc + 2, acc + 3))
                a.e("ds_write_b64 v%d, %s offset:%d" % (V_QW3 + tau, vr(acc, 2), t * 1024))
        a.e("s_mul_i32 s%d, s%d, 7168" % (S_T3, S_WAVE))
        a.e("v_add_u32 v%d, s%d, v%d" % (V_YW, S_T3, V_L16))
        a.e("v_add_u32 v%d, 0x%x, v%d" % (V_Y, OST, V_YW))
        a.e("s_waitcnt lgkmcnt(0)")
        a.e("s_barrier")
        for k in range(7):
            a.e("ds_read_b128 %s, v%d offset:%d" % (vr(160 + 4 * k, 4), V_Y, k * 1024))
        pg = grp
        ls = a.newlabel("LA_st")
        if opt.get("late", 0):
            a.e("s_cmp_eq_u32 s%d, 0" % S_TASK)
            a.e("s_cbranch_scc1 %s" % ls)
        sv = list(a.vm)
        if "ont1" in opt:
            l1 = a.newlabel("LA_st")
            a.e("s_cmp_eq_u32 s%d, 0" % S_TASK)
            a.e("s_cbranch_scc0 %s" % l1)
            o_stores(True, opt["ont1"])
            a.e("s_branch %s" % ls)
            a.label(l1)
            a.vm = list(sv)
        o_stores(True)
        if opt.get("late", 0):
            a.vm = sv
        a.label(ls)
        stamp(a, 7, dbgv)
        if dbg:
            a.e("s_memrealtime s[%d:%d]" % (S_TM, S_TM + 1))
            a.e("s_waitcnt lgkmcnt(0)")
            a.e("v_mov_b32 v%d, s%d" % (V_TMP, S_TM))
            a.lines.append("    buffer_store_dword v%d, off, s[%d:%d], 0 offset:48" % (V_TMP, S_DBG, S_DBG + 3))
        a.e("s_cmp_eq_u32 s%d, 0" % S_TASK)
        a.e("s_cbranch_scc0 %s" % ("LB_entry" if MG else "LA_end"))
        a.e("s_mov_b32 s%d, 1" % S_TASK)
        if opt.get("t2", 0) == 0:
            a.e("s_mov_b32 s%d, 0" % S_TYPE)
        elif opt.get("t2") == 2:
            a.e("s_xor_b32 s%d, s%d, 2" % (S_TYPE, S_TYPE))
        for srd, adv in ((S_K, 128 * 196608), (S_V, 128 * 196608)) + (() if opt.get("late", 0) else ((S_O, 128 * O_TASK),)):
            a.e("s_add_u32 s%d, s%d, %d" % (srd, srd, adv))
            a.e("s_addc_u32 s%d, s%d, 0" % (srd + 1, srd + 1))
        if dbg:
            a.e("s_add_u32 s%d, s%d, %d" % (S_DBG, S_DBG, 256 * 8 * 128))
            a.e("s_addc_u32 s%d, s%d, 0" % (S_DBG + 1, S_DBG + 1))
            stamp(a, 0, dbgv)
            a.e("s_memrealtime s[%d:%d]" % (S_TM, S_TM + 1))
            a.e("s_waitcnt lgkmcnt(0)")
            a.e("v_mov_b32 v%d, s%d" % (V_TMP, S_TM))
            a.lines.append("    buffer_store_dword v%d, off, s[%d:%d], 0 offset:52" % (V_TMP, S_DBG, S_DBG + 3))
        addr_rest()
        if opt.get("t2", 0):
            l = a.newlabel("LA_k2")
            a.e("s_cmp_eq_u32 s%d, 2" % S_TYPE)
            a.e("s_cbranch_scc0 %s" % l)
            a.e("s_waitcnt lgkmcnt(0)")
            a.e("s_barrier")
            sv = list(a.vm)
            a.vm = []
            for p in range(KR):
                k_issue(p)
            for p in range(12):
                k_take(p)
            a.vm = sv
            a.label(l)
        vmwait(0, " lgkmcnt(0)")
        a.e("s_branch LA_p1_re%d" % pg)
    a.label("LA_end")
    a.e("s_endpgm")


def kd(name, vgpr, sgpr=102):
    return """.amdhsa_kernel %s
  .amdhsa_next_free_vgpr %d
  .amdhsa_next_free_sgpr %d
  .amdhsa_accum_offset %d
  .amdhsa_group_segment_fixed_size 0
  .amdhsa_kernarg_size 104
  .amdhsa_user_sgpr_count 2
  .amdhsa_user_sgpr_kernarg_segment_ptr 1
  .amdhsa_system_sgpr_workgroup_id_x 1
.end_amdhsa_kernel
""" % (name, vgpr, sgpr, (vgpr + 3) // 4 * 4)


def build(opt):
    a = Asm()
    hdr = open("cdna_kernels/%s.s.ref" % NAME).read().splitlines()
    hdr = [l for l in hdr if l.startswith(";") and "@launch" not in l and "Override" not in l and "grid=ceil" not in l]
    import genb
    launches = ["; @launch kernel=attn_kernel grid=(256,1,1) block=(512,1,1) lds=%d" % LDS_A,
                "; @launch kernel=oproj_kernel grid=(256,1,1) block=(512,1,1) lds=%d" % genb.LDS_B]
    if opt.get("merge", 0):
        launches = ["; @launch kernel=%s_kernel grid=(256,1,1) block=(512,1,1) lds=%d" % (NAME, LDS_A)]
        if opt.get("merge") == 2:
            launches = ["; @launch grid=(256,1,1) block=(512,1,1) lds=%d" % LDS_A]
    out = "\n".join(hdr + launches) + "\n"
    out += '.amdgcn_target "amdgcn-amd-amdhsa--gfx950"\n.text\n'
    gen_attn(a, opt)
    genb.gen_oproj(a, opt)
    out += a.text()
    out += '.section .rodata,"a"\n.p2align 6\n'
    if opt.get("merge", 0):
        return out + kd(NAME + "_kernel", 256)
    out += kd("attn_kernel", 256)
    out += ".p2align 6\n" + kd("oproj_kernel", genb.NVGPR_B)
    return out


if __name__ == "__main__":
    opt = {}
    outp = "k.s"
    for arg in sys.argv[1:]:
        if "=" in arg:
            k, v = arg.split("=")
            if k == "out":
                outp = v
            else:
                opt[k] = int(v)
    open(outp, "w").write(build(opt))
```
